```python
import torch

def _softmax(x, axis=-1):
    return torch.softmax(x, dim=axis)
def _gelu(x):
    return torch.nn.functional.gelu(x, approximate="tanh")
def _silu(x):
    return torch.nn.functional.silu(x)
def _sigmoid(x):
    return torch.sigmoid(x)
def _layernorm(x, axis=-1, eps=1e-5):
    m = x.mean(dim=axis, keepdim=True)
    v = x.var(dim=axis, keepdim=True, unbiased=False)
    return (x - m) / torch.sqrt(v + eps)
def _scatter_add(tgt, idx, src, axis=0):
    return tgt.clone().index_add_(axis, idx, src)
def _segment_sum(src, seg, n):
    out = torch.zeros((n,) + src.shape[1:], dtype=src.dtype)
    return out.index_add_(0, seg, src)
def _pad(x, pw):
    flat = tuple(v for pair in reversed(pw) for v in pair)
    return torch.nn.functional.pad(x, flat)

kernel_name = 'standalone__modern_conv_block_replknet__vision'

def setup_inputs():

    _w = (lambda a: (lambda t: t.to(torch.bfloat16) if t.is_floating_point() else t)(torch.as_tensor(a)))
    H = W = 224
    C = 96
    K = 3
    return {
        "x": _w((lambda *s: torch.randn(*s, dtype=torch.bfloat16) * 0.05)(1, H, W, C)),
        "dw_large": _w((lambda *s: torch.randn(*s, dtype=torch.bfloat16) * 0.4)(K, K, C) * (1.0 / K)),
        "dw_small": _w((lambda *s: torch.randn(*s, dtype=torch.bfloat16) * 0.4)(5, 5, C) * 0.2),
        "w1": _w((lambda *s: torch.randn(*s, dtype=torch.bfloat16) * 0.4)(C, 4 * C) * (C ** -0.5)),
        "w2": _w((lambda *s: torch.randn(*s, dtype=torch.bfloat16) * 0.1)(4 * C, C) * ((4 * C) ** -0.5)),
    }

def reference(x, dw_large, dw_small, w1, w2):
    B, H, W, C = x.shape
    Kl = dw_large.shape[0]
    pl = (Kl - 1) // 2
    xpl = _pad(x, ((0,0),(pl,pl),(pl,pl),(0,0)))
    out = torch.zeros_like(x)
    for i in range(Kl):
        for j in range(Kl):
            out = out + xpl[:, i:i+H, j:j+W, :] * dw_large[i, j][None, None, None, :]
    Ks = dw_small.shape[0]
    ps = (Ks - 1) // 2
    xps = _pad(x, ((0,0),(ps,ps),(ps,ps),(0,0)))
    for i in range(Ks):
        for j in range(Ks):
            out = out + xps[:, i:i+H, j:j+W, :] * dw_small[i, j][None, None, None, :]
    h = _layernorm(out, axis=-1)
    h = _gelu(torch.einsum('bhwc,ce->bhwe', h, w1))
    h = torch.einsum('bhwe,ec->bhwc', h, w2)
    return x + h
```

```python
import re
TRANS={'v_exp_f32','v_rcp_f32','v_rsq_f32','v_log_f32','v_sqrt_f32','v_sin_f32','v_cos_f32'}
def regs_of(tok):
    tok=tok.strip()
    tok=tok.lstrip('-')
    m=re.match(r'^abs\((.*)\)$',tok)
    if m: tok=m.group(1)
    m=re.match(r'^([vas])(\d+)$',tok)
    if m: return [(m.group(1),int(m.group(2)))]
    m=re.match(r'^([vas])\[(\d+):(\d+)\]$',tok)
    if m: return [(m.group(1),i) for i in range(int(m.group(2)),int(m.group(3))+1)]
    if tok=='vcc': return [('x','vcc')]
    if tok=='exec': return [('x','exec')]
    if tok=='m0': return [('x','m0')]
    return []
def is_literal(tok):
    tok=tok.strip()
    if regs_of(tok) or tok in('off','vcc','exec','m0','scc'): return False
    try:
        if tok in('0.5','-0.5','1.0','-1.0','2.0','-2.0','4.0','-4.0'): return False
        v=int(tok,0)
        return not(-16<=v<=64)
    except ValueError:
        try:
            float(tok); return True
        except ValueError:
            return False
VOP3ONLY=('v_fma_f32','v_perm_b32','v_cvt_pk_bf16_f32','v_mad_','v_mul_lo_u32','v_mul_hi_u32','v_lshl_add_u32','v_add3_u32','v_add_lshl_u32','v_lshl_or_b32','v_and_or_b32','v_bfe_u32','v_pk_','v_mfma','v_readlane','v_writelane','v_med3','v_max3','v_min3','v_accvgpr','v_bitop3','v_or3','v_dot2_f32','v_mbcnt')
class I:
    def __init__(s,text):
        s.text=text.strip()
        t=s.text.split(';')[0].strip()
        s.label=t.endswith(':')
        s.directive=t.startswith('.')
        s.reads=set(); s.writes=set(); s.kind='other'; s.size=0; s.srcc=set(); s.ab=set()
        s.async_dst=set()
        if s.label or s.directive or not t:
            s.kind='none'; return
        p=t.split(None,1); s.op=p[0]; rest=p[1] if len(p)>1 else ''
        op=s.op
        base=re.sub(r'_e(32|64)$','',op); s.base=base
        ops=[]; depth=0; cur=''
        for ch in rest:
            if ch in '[(' : depth+=1
            if ch in '])' : depth-=1
            if ch==',' and depth==0: ops.append(cur.strip()); cur=''
            else: cur+=ch
        if cur.strip(): ops.append(cur.strip())
        mods=''
        if ops:
            last=ops[-1].split(None,1)
            ops[-1]=last[0]; mods=last[1] if len(last)>1 else ''
        s.ops=ops; s.mods=mods
        R=lambda k: set(regs_of(ops[k])) if k<len(ops) else set()
        allr=lambda a: set().union(*[R(k) for k in range(a,len(ops))]) if len(ops)>a else set()
        if base.startswith('v_mfma'):
            s.kind='mfma'; s.passes=8 if '32x32x16' in base else 4
            s.writes=R(0); s.ab=R(1)|R(2); s.srcc=R(3); s.reads=s.ab|s.srcc; s.size=8
        elif base.startswith('v_'):
            s.kind='trans' if base in TRANS else ('pk' if base.startswith('v_pk_') else 'valu')
            s.writes=R(0); s.reads=allr(1)
            if base.startswith('v_fmac') or base.startswith('v_writelane') or base.startswith('v_dot2c'): s.reads|=R(0)
            if base.startswith('v_permlane'): s.reads|=R(0); s.writes|=R(1)
            if base.startswith(('v_add_co','v_sub_co','v_addc_co')): s.writes|=R(1); s.reads=allr(2)
            big = op.endswith('_e64') or base.startswith(VOP3ONLY) or any(o.startswith('-') and regs_of(o) for o in ops) or 'abs(' in rest or mods!=''
            if base.startswith('v_cmp') and ops[0]!='vcc': big=True
            if base.startswith('v_cndmask') and ops[-1]!='vcc': big=True
            if not big and len(ops)>=3 and not base.startswith('v_cmp'):
                k=2
                if base.startswith(('v_add_co','v_sub_co','v_addc_co')): k=3
                if not ops[k].startswith('v'): big=True
            if not big and base.startswith('v_cmp') and not ops[2].startswith('v'): big=True
            s.size=8 if (big or any(is_literal(o) for o in ops[1:])) else 4
        elif base.startswith('ds_read') or base.startswith('ds_bpermute') or base.startswith('ds_swizzle'):
            s.kind='ds'; s.async_dst=R(0); s.writes=R(0); s.reads=allr(1); s.size=8
        elif base.startswith('ds_write'):
            s.kind='ds'; s.reads=allr(0); s.size=8
        elif base.startswith('buffer_load'):
            s.kind='vmem'; s.size=8
            if re.search(r'\blds\b',mods):
                s.reads=allr(0)|{('x','m0')}; s.dma=True
            else:
                s.async_dst=R(0); s.writes=R(0); s.reads=allr(1)
        elif base.startswith('buffer_store'):
            s.kind='vmem'; s.size=8; s.reads=allr(0); s.store_data=R(0) if ('x4' in base or 'x3' in base) else set()
        elif base.startswith('global_load'):
            s.kind='vmem'; s.size=8; s.async_dst=R(0); s.writes=R(0); s.reads=allr(1)
        elif base.startswith('global_store'):
            s.kind='vmem'; s.size=8; s.reads=allr(0); s.store_data=R(1) if ('x4' in base or 'x3' in base) else set()
        elif base.startswith('s_load') or base.startswith('s_memtime') or base.startswith('s_memrealtime'):
            s.kind='smem'; s.size=8; s.async_dst=R(0); s.writes=R(0); s.reads=allr(1)
        elif base in('s_waitcnt','s_nop','s_barrier','s_endpgm','s_setprio','s_sleep') or base.startswith(('s_branch','s_cbranch')):
            s.kind='sopp'; s.size=4
        elif base.startswith('s_cmp'):
            s.kind='salu'; s.reads=allr(0); s.size=8 if any(is_literal(o) for o in ops) else 4
        elif base.startswith('s_'):
            s.kind='salu'; s.writes=R(0); s.reads=allr(1)
            s.size=8 if (any(is_literal(o) for o in ops[1:]) and not base.startswith(('s_movk','s_addk','s_mulk'))) else 4
        else:
            raise Exception("unknown instr "+t)
    def ws(s):
        if s.kind=='none': return 0
        if s.base=='s_nop': return int(s.ops[0],0)+1
        return 1
    def isvalu(s): return s.kind in('valu','trans','pk')

def need_ws(p,c):
    n=0
    vreg=lambda S:{r for r in S if r[0] in 'va'}
    sreg=lambda S:{r for r in S if r[0] in 'sx'}
    if p.isvalu():
        if c.kind=='mfma' and vreg(p.writes)&c.reads: n=max(n,2)
        if p.kind=='trans' and c.kind in('valu','pk','mfma') and p.writes&c.reads: n=max(n,1)
        if p.kind=='trans' and c.kind in('ds','vmem') and p.writes&c.reads: n=max(n,1)
        sw=sreg(p.writes)
        if sw:
            if c.kind=='vmem' and sw&c.reads: n=max(n,5)
            if c.isvalu() and sw&c.reads: n=max(n,4 if c.base.startswith(('v_readlane','v_writelane')) else 2)
            if c.kind in('salu','smem') and sw&c.reads: n=max(n,3)
        if c.isvalu() and c.base.startswith(('v_readfirstlane','v_readlane')) and vreg(p.writes)&c.reads: n=max(n,1)
        if c.isvalu() and (c.base.startswith('v_permlane') or 'dpp' in c.text or 'row_' in c.mods or 'quad_perm' in c.mods) and vreg(p.writes)&c.reads: n=max(n,2)
    if p.kind=='mfma':
        D=p.writes
        big=p.passes==8
        if c.kind=='mfma':
            if D&c.ab: n=max(n,12 if big else 8)
            if D&c.srcc:
                if not(c.srcc==D and c.passes==p.passes): n=max(n,10 if big else 6)
            elif D&c.writes:
                n=max(n,10 if big else 6)
        elif c.isvalu() or c.kind in('ds','vmem'):
            if D&(c.reads|c.writes): n=max(n,12 if big else 8)
        if c.isvalu() and p.srcc&c.writes: n=max(n,7 if big else 3)
    if p.kind=='salu' and ('x','m0') in p.writes and getattr(c,'dma',False): n=max(n,1)
    if p.kind=='salu' and ('x','exec') in p.writes and c.kind=='mfma': n=max(n,4)
    if p.kind=='vmem' and getattr(p,'store_data',None):
        if c.kind!='none' and p.store_data&c.writes: n=max(n,2)
    return n

class Prog:
    def __init__(s): s.L=[]
    def e(s,text):
        for line in text.split('\n'):
            if line.strip(): s.L.append(I(line))
    def finalize(s,verbose=True):
        out=[]; vm=[]; lg=[]; nn=0; nw=0
        def emit(i): out.append(i)
        for ins in s.L:
            if ins.kind=='none': emit(ins); continue
            if ins.base=='s_waitcnt':
                m=re.search(r'vmcnt\((\d+)\)',ins.text)
                if m:
                    n=int(m.group(1)); vm=vm[len(vm)-n:] if n<len(vm) and n>0 else ([] if n==0 else vm)
                m=re.search(r'lgkmcnt\((\d+)\)',ins.text)
                if m:
                    n=int(m.group(1))
                    if n>0 and any(k=='smem' for k,_ in lg): pass
                    else: lg=lg[len(lg)-n:] if n<len(lg) and n>0 else ([] if n==0 else lg)
                emit(ins); continue
            touch=ins.reads|ins.writes
            w=''
            idx=max([k for k,(kk,d) in enumerate(vm) if d&touch],default=-1)
            if idx>=0:
                n=len(vm)-1-idx; w+=f' vmcnt({n})'; vm=vm[idx+1:]
            idx=max([k for k,(kk,d) in enumerate(lg) if d&touch],default=-1)
            if idx>=0:
                if any(kk=='smem' for kk,_ in lg): n=0; lg=[]
                else: n=min(15,len(lg)-1-idx); lg=lg[len(lg)-n:] if n>0 else []
                w+=f' lgkmcnt({n})'
            if w:
                emit(I('s_waitcnt'+w+' ; auto')); nw+=1
            need=0; dist=0
            for p in reversed(out):
                if p.kind=='none': continue
                r=need_ws(p,ins)
                if r-dist>need: need=r-dist
                dist+=p.ws()
                if dist>=20: break
            if need>0:
                emit(I(f's_nop {need-1} ; auto')); nn+=1
            emit(ins)
            if ins.kind=='vmem':
                vm.append(('vm',ins.async_dst))
                assert len(vm)<=63, "vmcnt overflow"
            if ins.kind=='ds': lg.append(('ds',ins.async_dst))
            if ins.kind=='smem': lg.append(('smem',ins.async_dst))
        s.L=out
        if verbose: print(f"auto waits {nw}, auto nops {nn}, bytes {sum(i.size for i in out)}")
    def align_fix(s):
        off=0; out=[]
        for ins in s.L:
            if ins.kind=='none' and '@align8' in ins.text:
                if off%8:
                    done=False
                    for k in range(len(out)-1,max(len(out)-12,-1),-1):
                        p=out[k]
                        if p.kind in('trans','valu') and p.size==4 and not p.op.endswith('_e32') and not p.base.startswith(('v_readfirstlane','v_fmac','v_cmp')):
                            out[k]=I(p.text.replace(p.op,p.op+'_e64',1)); done=True; break
                    if not done: out.append(I('s_nop 0 ; align'))
                    off+=4
                continue
            out.append(ins); off+=ins.size
        s.L=out
    def text(s):
        return '\n'.join((i.text if (i.label or i.directive) else '    '+i.text) for i in s.L)+'\n'
```

```python
import math, struct, sys, os
from asmlib import *
NAME="standalone__modern_conv_block_replknet__vision"
def f2u(x): return struct.unpack('<I', struct.pack('<f', x))[0]
KK=2*math.sqrt(2/math.pi)*math.log2(math.e)
SC=(KK*0.044715)**(1/3)
AP=KK/SC
DBG=os.environ.get('DBG','')
STAMPS=os.environ.get('STAMPS','')=='1'
STORE_MOD=os.environ.get('STORE_MOD','')
WST=0; WSTW=18432
PL=73728; PLC=720; PLG=5776
TB=143040; TBW=4032; TBC=336
ST=155648
HB=112640; HC=3584
XB=51968; XW=12992
LDS_TOTAL=163840
ROW=43008
XBYTES=224*224*96*2
sXS,sDL,sDS,sW1,sW2,sOS=24,28,32,36,40,44
sWV,sY0,sX0=48,49,50
sAP,sSC=52,54
sPLO,sPHI=56,57
sEX=58
sTR=60
sT0,sT1,sT2,sT3=67,68,69,51
sWS=20
stampn=[0]
stampnames=[]
p=Prog(); e=p.e
def srd(s): return f"s[{s}:{s+3}]"
def V(a,n=1): return f"v{a}" if n==1 else f"v[{a}:{a+n-1}]"
def A(a,n=1): return f"a{a}" if n==1 else f"a[{a}:{a+n-1}]"
def stamp(name):
    if STAMPS:
        k=stampn[0]; stampn[0]+=1; stampnames.append(name)
        e(f"s_memtime s[{70+2*k}:{71+2*k}]\ns_waitcnt lgkmcnt(0)")
vLANE=1; vBR=2; vHW=3; vSTA=4; vW1R=5; vW2R=6; vH1R=7; vXW=8; vRA0=9; vRB0=10; vRA1=11; vRB1=12; vGA=13; vGB=14; vW2D=15
vt=[240+i for i in range(16)]
XS=16
PT=96
DW=128
DU=136
WN=144
AOV=176
ACC=16
BRING=112
S1=184; S2=188
HP=192
def afrag(cl,f):
    k=cl*2+f
    return (('a',72+4*k) if k<46 else ('v',AOV+4*(k-46)))
def R(t,n): return (A if t[0]=='a' else V)(t[1],n)

e(f"s_cmp_ge_u32 s2, 224\ns_cbranch_scc1 L_end")
stamp("start")
for k,s in enumerate([sXS,sDL,sDS,sW1,sW2,sOS]):
    e(f"s_load_dwordx2 s[{s}:{s+1}], s[0:1], {8*k}")
if DBG or STAMPS: e(f"s_load_dwordx2 s[{sWS}:{sWS+1}], s[0:1], 56")
e("s_getpc_b64 s[6:7]")
e(f"v_lshlrev_b32 {V(vt[0])}, 7, v0")
e(f"global_load_dword {V(vt[15])}, {V(vt[0])}, s[6:7]")
e(f"v_and_b32 {V(vLANE)}, 63, v0")
e(f"v_lshrrev_b32 {V(vt[1])}, 6, v0")
e(f"v_min_u32 {V(vt[2])}, 59, {V(vLANE)}")
e(f"v_readfirstlane_b32 s{sWV}, {V(vt[1])}")
e(f"s_and_b32 s{sT0}, s2, 7\ns_mul_i32 s{sT0}, s{sT0}, 28\ns_lshr_b32 s{sT1}, s2, 3\ns_add_u32 s{sT0}, s{sT0}, s{sT1}")
e(f"s_mul_i32 s{sT1}, s{sT0}, 4682\ns_lshr_b32 s{sT1}, s{sT1}, 16")
e(f"s_mul_i32 s{sY0}, s{sT1}, 14\ns_sub_u32 s{sT0}, s{sT0}, s{sY0}")
e(f"s_lshl_b32 s{sX0}, s{sT0}, 4")
for s,n in [(sXS,XBYTES),(sDL,9*192),(sDS,25*192),(sW1,96*384*2),(sW2,96*384*2),(sOS,XBYTES)]:
    e(f"s_mov_b32 s{s+2}, {n}\ns_mov_b32 s{s+3}, 0x20000")
e(f"v_mul_u32_u24 {V(vt[3])}, 43, {V(vt[2])}\nv_lshrrev_b32 {V(vt[3])}, 9, {V(vt[3])}")
e(f"v_mul_u32_u24 {V(vt[4])}, 12, {V(vt[3])}\nv_sub_u32 {V(vt[4])}, {V(vt[2])}, {V(vt[4])}")
e(f"v_mul_u32_u24 {V(vt[5])}, 52, {V(vt[2])}\nv_lshrrev_b32 {V(vt[5])}, 8, {V(vt[5])}")
e(f"v_mul_u32_u24 {V(vt[6])}, 5, {V(vt[5])}\nv_sub_u32 {V(vt[6])}, {V(vt[2])}, {V(vt[6])}")
e(f"s_mul_i32 s{sT1}, s{sWV}, 48")
e(f"v_lshl_add_u32 {V(vt[7])}, {V(vt[5])}, 2, s{sT1}")
e(f"v_mul_u32_u24 {V(vt[8])}, 960, {V(vt[6])}\nv_add_u32 {V(vt[8])}, {V(vt[8])}, {V(vt[7])}")
e(f"v_mul_u32_u24 {V(vt[9])}, 576, {V(vt[6])}\nv_add_u32 {V(vt[9])}, {V(vt[9])}, {V(vt[7])}\nv_subrev_u32 {V(vt[9])}, 576, {V(vt[9])}")
e(f"s_add_u32 s{sT1}, s{sY0}, s{sWV}\ns_mul_i32 s{sT1}, s{sT1}, {ROW}\ns_mul_i32 s{sT2}, s{sX0}, 192\ns_add_u32 s{sT1}, s{sT1}, s{sT2}\ns_sub_u32 s{sT1}, s{sT1}, {2*ROW+384}")
e(f"v_mul_u32_u24 {V(vt[10])}, 768, {V(vt[3])}\nv_lshl_add_u32 {V(vt[10])}, {V(vt[4])}, 4, {V(vt[10])}\nv_add_u32 {V(vt[10])}, s{sT1}, {V(vt[10])}")
e(f"v_add_u32 {V(vt[11])}, 384, {V(vt[10])}")
e(f"s_cmp_eq_u32 s{sT0}, 0\ns_cselect_b32 s{sT2}, 0, 63\ns_cmp_eq_u32 s{sT0}, 13\ns_cselect_b32 s{sT3}, 4, 63")
e(f"v_bfrev_b32 {V(vt[12])}, 1")
e(f"v_cmp_eq_u32 vcc, s{sT2}, {V(vt[3])}\nv_cndmask_b32 {V(vt[10])}, {V(vt[10])}, {V(vt[12])}, vcc")
e(f"v_cmp_eq_u32 vcc, s{sT3}, {V(vt[3])}\nv_cndmask_b32 {V(vt[11])}, {V(vt[11])}, {V(vt[12])}, vcc")
e(f"s_cmp_lt_u32 s{sWV}, 2\ns_cselect_b32 s{sT3}, {4*ROW}, 0x40000000\ns_cselect_b64 s[{sEX}:{sEX+1}], -1, 0")
e("s_waitcnt lgkmcnt(0)")
stamp("kernarg")
for dx in range(5): e(f"buffer_load_dword {V(DW+dx)}, {V(vt[8])}, {srd(sDS)}, 0 offen offset:{192*dx}")
for i in range(3): e(f"buffer_load_dword {V(DW+5+i)}, {V(vt[9])}, {srd(sDL)}, 0 offen offset:{192*i}")
for k in range(5):
    if k>0:
        inc = f"{4*ROW}" if k<4 else f"s{sT3}"
        e(f"v_add_u32 {V(vt[10])}, {inc}, {V(vt[10])}\nv_add_u32 {V(vt[11])}, {inc}, {V(vt[11])}")
    for i in range(4):
        e(f"buffer_load_dwordx4 {V(XS+16*k+4*i,4)}, {V(vt[10+(i>>1)])}, {srd(sXS)}, 0 offen offset:{192*(i&1)}")
for i in range(3):
    e(f"v_add_u32 {V(vt[13])}, {64*i}, {V(vLANE)}")
    e(f"v_mul_u32_u24 {V(vt[14])}, 171, {V(vt[13])}\nv_lshrrev_b32 {V(vt[14])}, 11, {V(vt[14])}")
    e(f"v_mul_u32_u24 {V(vt[14])}, 576, {V(vt[14])}\nv_lshl_add_u32 {V(vt[7+i])}, {V(vLANE)}, 4, {V(vt[14])}")
e(f"s_mul_i32 s{sT1}, s{sWV}, 192\ns_mul_i32 s{sT2}, s{sWV}, {WSTW}")
for g in range(6):
    e(f"s_mov_b32 m0, s{sT2}")
    for i in range(3):
        e(f"buffer_load_dwordx4 {V(vt[7+i])}, {srd(sW1)}, s{sT1} offen offset:{1024*i} lds")
    if g<5: e(f"s_add_u32 s{sT1}, s{sT1}, {16*768}\ns_add_u32 s{sT2}, s{sT2}, 3072")
stamp("issued")
e(f"s_mov_b32 s{sAP}, {f2u(AP):#x}\ns_mov_b32 s{sAP+1}, {f2u(AP):#x}\ns_mov_b32 s{sSC}, {f2u(SC):#x}\ns_mov_b32 s{sSC+1}, {f2u(SC):#x}")
e(f"s_mov_b32 s{sPLO}, 0x05040100\ns_mov_b32 s{sPHI}, 0x07060302")
e(f"s_lshr_b32 s{sT1}, s{sWV}, 1\ns_mul_i32 s{sT1}, s{sT1}, 80\ns_and_b32 s{sT2}, s{sWV}, 1\ns_lshl_b32 s{sT2}, s{sT2}, 3\ns_add_u32 s{sT1}, s{sT1}, s{sT2}\ns_add_u32 s{sT1}, s{sT1}, {PL}")
e(f"v_mul_u32_u24 {V(vt[10])}, {PLG}, {V(vt[4])}\nv_lshl_add_u32 {V(vt[10])}, {V(vt[3])}, 4, {V(vt[10])}\nv_add_u32 {V(vt[10])}, s{sT1}, {V(vt[10])}")
vPW=vt[10]
e(f"s_mul_i32 s{sT1}, s{sWV}, {TBW}\ns_add_u32 s{sT1}, s{sT1}, {TB}")
e(f"v_mul_u32_u24 {V(vt[12])}, {TBC}, {V(vt[5])}\nv_add_u32 {V(vt[12])}, s{sT1}, {V(vt[12])}\nv_lshl_add_u32 {V(vt[11])}, {V(vt[6])}, 6, {V(vt[12])}")
vTW=vt[11]; vTZ=vt[12]
e(f"v_lshrrev_b32 {V(vt[0])}, 4, {V(vLANE)}\nv_and_b32 {V(vt[1])}, 3, {V(vLANE)}\nv_bfe_u32 {V(vt[2])}, {V(vLANE)}, 2, 2")
e(f"s_movk_i32 s{sT2}, 0x3120\ns_movk_i32 s{sT3}, 0x5320")
e(f"v_lshlrev_b32 {V(vt[3])}, 2, {V(vt[0])}\nv_bfe_u32 {V(vt[3])}, s{sT2}, {V(vt[3])}, 4")
e(f"v_lshlrev_b32 {V(vt[4])}, 2, {V(vt[2])}\nv_bfe_u32 {V(vt[4])}, s{sT3}, {V(vt[4])}, 4")
e(f"v_lshlrev_b32 {V(vt[5])}, 1, {V(vt[3])}\nv_sub_u32 {V(vt[5])}, {V(vt[5])}, {V(vt[2])}")
e(f"v_mov_b32 {V(vt[9])}, 320")
for a in range(2):
    if a: e(f"v_add_u32 {V(vt[5])}, 1, {V(vt[5])}")
    e(f"v_lshlrev_b32 {V(vt[6])}, 6, {V(vt[5])}\nv_lshl_add_u32 {V(vt[6])}, {V(vt[1])}, 4, {V(vt[6])}")
    e(f"v_cmp_gt_u32 vcc, 5, {V(vt[5])}\nv_cndmask_b32 {V(vt[6])}, {V(vt[9])}, {V(vt[6])}, vcc")
    e(f"v_add_u32 {V(vt[7+a])}, s{sT1}, {V(vt[6])}")
vAR=[vt[7],vt[8]]
e(f"s_mul_i32 s{sT1}, s{sWV}, {3*PLG}\ns_add_u32 s{sT1}, s{sT1}, {PL}")
e(f"v_add_u32 {V(vt[5])}, {V(vt[3])}, {V(vt[4])}\nv_mul_u32_u24 {V(vt[5])}, 5, {V(vt[5])}\nv_add_u32 {V(vt[5])}, {V(vt[5])}, {V(vt[1])}\nv_lshl_add_u32 {V(vBR)}, {V(vt[5])}, 4, s{sT1}")
e(f"s_mul_i32 s{sT1}, s{sWV}, {3*HC}\ns_add_u32 s{sT1}, s{sT1}, {HB}")
e(f"v_lshl_add_u32 {V(vt[5])}, {V(vt[4])}, 1, {V(vt[0])}")
e(f"v_lshrrev_b32 {V(vt[6])}, 2, {V(vt[5])}\nv_xor_b32 {V(vt[6])}, {V(vt[6])}, {V(vt[5])}\nv_and_b32 {V(vt[6])}, 1, {V(vt[6])}")
e(f"v_lshl_add_u32 {V(vt[6])}, {V(vt[6])}, 2, {V(vt[1])}\nv_lshl_add_u32 {V(vt[6])}, {V(vt[6])}, 4, s{sT1}")
e(f"v_lshrrev_b32 {V(vt[5])}, 1, {V(vt[5])}\nv_lshl_add_u32 {V(vHW)}, {V(vt[5])}, 9, {V(vt[6])}")
e(f"v_lshlrev_b32 {V(vSTA)}, 4, {V(vLANE)}\nv_add_u32 {V(vSTA)}, {ST}, {V(vSTA)}")
e(f"s_mul_i32 s{sT1}, s{sWV}, {WSTW}")
e(f"v_and_b32 {V(vt[5])}, 1, {V(vt[0])}\nv_lshlrev_b32 {V(vt[5])}, 5, {V(vt[5])}\nv_lshl_add_u32 {V(vt[5])}, {V(vt[1])}, 3, {V(vt[5])}\nv_add_u32 {V(vt[5])}, s{sT1}, {V(vt[5])}")
e(f"v_lshrrev_b32 {V(vt[6])}, 5, {V(vLANE)}")
e(f"v_lshl_add_u32 {V(vt[9])}, {V(vt[6])}, 3, {V(vt[2])}\nv_mul_u32_u24 {V(vt[9])}, 192, {V(vt[9])}\nv_add_u32 {V(vW1R)}, {V(vt[9])}, {V(vt[5])}")
e(f"v_lshl_add_u32 {V(vt[9])}, {V(vt[6])}, 2, {V(vt[2])}\nv_mul_u32_u24 {V(vt[9])}, 192, {V(vt[9])}\nv_add_u32 {V(vW2R)}, {V(vt[9])}, {V(vt[5])}")
e(f"v_lshl_add_u32 {V(vW2D)}, {V(vLANE)}, 4, s{sT1}")
e(f"v_and_b32 {V(vt[9])}, 31, {V(vLANE)}\nv_mul_u32_u24 {V(vt[13])}, {HC}, {V(vt[6])}\nv_lshl_add_u32 {V(vt[13])}, {V(vt[9])}, 4, {V(vt[13])}\nv_add_u32 {V(vH1R)}, {HB}, {V(vt[13])}")
e(f"s_mul_i32 s{sT1}, s{sWV}, {XW}")
e(f"v_lshrrev_b32 {V(vt[13])}, 3, {V(vt[9])}\nv_mul_u32_u24 {V(vt[13])}, 204, {V(vt[13])}\nv_and_b32 {V(vt[14])}, 7, {V(vLANE)}\nv_mul_u32_u24 {V(vt[14])}, 25, {V(vt[14])}\nv_add_u32 {V(vt[13])}, {V(vt[13])}, {V(vt[14])}")
e(f"v_mul_u32_u24 {V(vt[14])}, 12, {V(vt[6])}\nv_add_u32 {V(vt[13])}, {V(vt[13])}, {V(vt[14])}\nv_lshl_add_u32 {V(vXW)}, {V(vt[13])}, 4, s{sT1}")
e(f"s_mul_i32 s{sT1}, s{sWV}, 50")
e(f"v_mul_u32_u24 {V(vt[5])}, 43, {V(vLANE)}\nv_lshrrev_b32 {V(vt[5])}, 9, {V(vt[5])}")
e(f"v_mul_u32_u24 {V(vt[6])}, 12, {V(vt[5])}\nv_sub_u32 {V(vt[6])}, {V(vLANE)}, {V(vt[6])}")
def slotaddr(dst0,dst1,xl,g):
    e(f"v_and_b32 {V(vt[13])}, 3, {V(xl)}\nv_mul_u32_u24 {V(vt[13])}, 204, {V(vt[13])}\nv_lshrrev_b32 {V(vt[14])}, 2, {V(xl)}\nv_mul_u32_u24 {V(vt[14])}, 25, {V(vt[14])}")
    e(f"v_add3_u32 {V(vt[13])}, {V(vt[13])}, {V(vt[14])}, {V(g)}\nv_add_lshl_u32 {V(dst0)}, {V(vt[13])}, s{sT1}, 4\nv_add_u32 {V(dst1)}, {XB}, {V(dst0)}")
slotaddr(vRA0,vRA1,vt[5],vt[6])
e(f"v_add_u32 {V(vt[9])}, 128, {V(vLANE)}\nv_mul_u32_u24 {V(vt[5])}, 171, {V(vt[9])}\nv_lshrrev_b32 {V(vt[5])}, 12, {V(vt[5])}")
e(f"v_mul_u32_u24 {V(vt[6])}, 24, {V(vt[5])}\nv_sub_u32 {V(vt[6])}, {V(vt[9])}, {V(vt[6])}")
e(f"v_and_b32 {V(vt[9])}, 1, {V(vt[6])}\nv_mul_u32_u24 {V(vt[9])}, 12, {V(vt[9])}\nv_lshrrev_b32 {V(vt[6])}, 1, {V(vt[6])}\nv_add_u32 {V(vt[6])}, {V(vt[6])}, {V(vt[9])}")
slotaddr(vRB0,vRB1,vt[5],vt[6])
e(f"s_and_b32 s{sT1}, s{sWV}, 1\ns_lshl_b32 s{sT1}, s{sT1}, 3\ns_add_u32 s{sT1}, s{sT1}, s{sX0}\ns_mul_i32 s{sT1}, s{sT1}, 192")
e(f"v_lshl_add_u32 {V(vGA)}, {V(vLANE)}, 4, s{sT1}\nv_lshl_add_u32 {V(vGB)}, {V(vLANE)}, 3, s{sT1}")
e(f"s_lshr_b32 s{sT1}, s{sWV}, 1\ns_xor_b32 s{sT2}, s{sT1}, 1\ns_add_u32 s{sT1}, s{sT1}, s{sY0}\ns_add_u32 s{sT2}, s{sT2}, s{sY0}\ns_mul_i32 s{sT1}, s{sT1}, {ROW}\ns_mul_i32 s{sT2}, s{sT2}, {ROW}")
for t in range(7):
    e(f"s_add_u32 s{sTR+t}, s{sT2 if (t>>1)&1 else sT1}, {2*t*ROW}")
for z in (WN+3,WN+7,WN+8,WN+12): e(f"v_mov_b32 {V(z)}, 0")
for i in range(4): e(f"v_mov_b32 {V(PT+i)}, 0")
e(f"ds_write_b128 {V(vTZ)}, {V(PT,4)} offset:320")
for rho in range(2):
    for i in range(8):
        e(f"v_lshlrev_b32 {V(DU+i)}, 16, {V(DW+i)}" if rho==0 else f"v_and_b32 {V(DU+i)}, 0xffff0000, {V(DW+i)}")
    if rho==0: stamp("dw")
    for i in range(3): e(f"v_add_f32 {V(DU+1+i)}, {V(DU+1+i)}, {V(DU+5+i)}")
    w=[V(DU+i) for i in range(5)]
    E=[(w[0],w[1]),(w[2],w[3]),(w[4],'0')]; O=[('0',w[0]),(w[1],w[2]),(w[3],w[4])]
    if rho==1: e("s_waitcnt lgkmcnt(0)")
    for k in range(3):
        e(f"v_cvt_pk_bf16_f32 {V(WN+k)}, {E[k][0]}, {E[k][1]}")
        e(f"v_cvt_pk_bf16_f32 {V(WN+4+k)}, {O[k][0]}, {O[k][1]}")
        e(f"v_cvt_pk_bf16_f32 {V(WN+9+k)}, {E[k][0]}, {E[k][1]}")
        e(f"v_cvt_pk_bf16_f32 {V(WN+13+k)}, {O[k][0]}, {O[k][1]}")
    for ox in range(4): e(f"ds_write_b128 {V(vTW)}, {V(WN+4*ox,4)} offset:{16*ox}")
    e("s_waitcnt lgkmcnt(0)")
    for cp in range(12):
        for f in range(2):
            t=afrag(2*cp+rho,f)
            for a in range(2):
                e(f"ds_read_b64 {R((t[0],t[1]+2*a),2)}, {V(vAR[a])} offset:{cp*TBC+8*f}")
stamp("table")
for k in range(5):
    pt=PT+16*(k&1)
    X=lambda i,d: V(XS+16*k+4*i+d)
    for d in range(4):
        for hi in range(2):
            j=2*d+hi
            sel=sPHI if hi else sPLO
            e(f"v_perm_b32 {V(pt+2*j)}, {X(1,d)}, {X(0,d)}, s{sel}")
            e(f"v_perm_b32 {V(pt+2*j+1)}, {X(3,d)}, {X(2,d)}, s{sel}")
    if k==4: e(f"s_mov_b64 exec, s[{sEX}:{sEX+1}]")
    for j in range(8):
        e(f"ds_write_b64 {V(vPW)}, {V(pt+2*j,2)} offset:{j*PLC+160*k}")
    if k==4: e("s_mov_b64 exec, -1")
stamp("planar")
e("s_waitcnt vmcnt(0)")
stamp("w1arr")
def w1f(mt,ks): return 4*(mt*6+ks)
def w2f(ot,mt,u): return 72+4*(ot*6+mt*2+u)
for mt in range(3):
    for ks in range(6):
        for h in range(2):
            e(f"ds_read_b64_tr_b16 {A(w1f(mt,ks)+2*h,2)}, {V(vW1R)} offset:{(16*ks+4*h)*192+64*mt}")
e("s_waitcnt lgkmcnt(0)")
e(f"s_mul_i32 s{sT2}, s{sWV}, {WSTW}\ns_mov_b32 s{sT1}, 0")
for g in range(5):
    e(f"s_mov_b32 m0, s{sT2}")
    for i in range(4 if g<4 else 2):
        e(f"buffer_load_dwordx4 {V(vW2D)}, {srd(sW2)}, s{sT1} offen offset:{1024*i} lds")
    if g<4: e(f"s_add_u32 s{sT1}, s{sT1}, 4096\ns_add_u32 s{sT2}, s{sT2}, 4096")
e("s_barrier")
stamp("bar1")
def bread(k):
    cl,f=k>>1,k&1
    return f"ds_read_b128 {V(BRING+4*(k%8),4)}, {V(vBR)} offset:{(cl>>3)*PLG+(cl&7)*PLC+16*f}"
for k in range(7): e(bread(k))
for k in range(48):
    cl,f=k>>1,k&1
    d=V(ACC+4*cl,4)
    e(f"s_waitcnt lgkmcnt({min(6,47-k)})")
    e(f"v_mfma_f32_16x16x32_bf16 {d}, {R(afrag(cl,f),4)}, {V(BRING+4*(k%8),4)}, {d if f else '0'}")
    if k+7<48: e(bread(k+7))
    c2=cl-3
    if c2>=1:
        for j in (2*f,2*f+1):
            e(f"v_add_f32 {V(S1+j)}, {V(ACC+j) if c2==1 else V(S1+j)}, {V(ACC+4*c2+j)}")
for cl in range(24):
    for h in range(2):
        a=V(ACC+4*cl+2*h,2)
        if cl==0: e(f"v_pk_mul_f32 {V(S2+2*h,2)}, {a}, {a}")
        else: e(f"v_pk_fma_f32 {V(S2+2*h,2)}, {a}, {a}, {V(S2+2*h,2)}")
for cl in range(21,24):
    for h in range(2): e(f"v_pk_add_f32 {V(S1+2*h,2)}, {V(S1+2*h,2)}, {V(ACC+4*cl+2*h,2)}")
e(f"s_lshl_b32 s{sT1}, s{sWV}, 11\nv_add_u32 {V(vt[0])}, s{sT1}, {V(vSTA)}")
e(f"ds_write_b128 {V(vt[0])}, {V(S1,4)}\nds_write_b128 {V(vt[0])}, {V(S2,4)} offset:1024")
e("s_waitcnt lgkmcnt(0)")
stamp("conv")
e("s_barrier")
SR=BRING
for w in range(4):
    for h in range(2): e(f"ds_read_b128 {V(SR+8*w+4*h,4)}, {V(vSTA)} offset:{2048*w+1024*h}")
e("s_waitcnt vmcnt(0)")
for ot in range(3):
    for mt in range(3):
        for u in range(2):
            for h in range(2):
                e(f"ds_read_b64_tr_b16 {A(w2f(ot,mt,u)+2*h,2)}, {V(vW2R)} offset:{(32*mt+16*u+8*h)*192+64*ot}")
for k in range(4):
    e(f"v_pk_add_f32 {V(SR+2*k,2)}, {V(SR+2*k,2)}, {V(SR+8+2*k,2)}")
    e(f"v_pk_add_f32 {V(SR+16+2*k,2)}, {V(SR+16+2*k,2)}, {V(SR+24+2*k,2)}")
for k in range(4):
    e(f"v_pk_add_f32 {V(SR+2*k,2)}, {V(SR+2*k,2)}, {V(SR+16+2*k,2)}")
inv=f"{f2u(1/96):#x}"
for j in range(4):
    e(f"v_mul_f32 {V(SR+j)}, {inv}, {V(SR+j)}")
    e(f"v_mul_f32 {V(SR+4+j)}, {inv}, {V(SR+4+j)}")
for j in range(4): e(f"v_fma_f32 {V(SR+4+j)}, -{V(SR+j)}, {V(SR+j)}, {V(SR+4+j)}")
for j in range(4): e(f"v_max_f32 {V(SR+4+j)}, 0, {V(SR+4+j)}")
for j in range(4): e(f"v_add_f32 {V(SR+4+j)}, {f2u(1e-5):#x}, {V(SR+4+j)}")
for j in range(4): e(f"v_rsq_f32 {V(SR+4+j)}, {V(SR+4+j)}")
for j in range(4): e(f"v_mul_f32 {V(SR+4+j)}, s{sSC}, {V(SR+4+j)}")
for j in range(4): e(f"v_mul_f32 {V(SR+j)}, -{V(SR+j)}, {V(SR+4+j)}")
e(";@align8")
for u in range(3):
    for cl in range(8*u,8*u+8):
        for h in range(2):
            a=V(ACC+4*cl+2*h,2)
            e(f"v_pk_fma_f32 {a}, {a}, {V(SR+4+2*h,2)}, {V(SR+2*h,2)}")
    for j in range(4):
        for d in range(4):
            e(f"v_cvt_pk_bf16_f32 {V(HP+16*u+4*j+d)}, {V(ACC+4*(8*u+2*d)+j)}, {V(ACC+4*(8*u+2*d+1)+j)}")
        e(f"ds_write_b128 {V(vHW)}, {V(HP+16*u+4*j,4)} offset:{u*HC+128*j}")
e("s_waitcnt lgkmcnt(0)")
stamp("ln")
e("s_barrier")
if DBG=='h':
    e(f"s_mul_i32 s{sT1}, s2, 43008\nv_lshlrev_b32 {V(vt[0])}, 4, v0\nv_add_u32 {V(vt[1])}, {HB}, {V(vt[0])}\nv_add_u32 {V(vt[0])}, s{sT1}, {V(vt[0])}")
    for k in range(11):
        if k==10: e(f"v_cmp_gt_u32 vcc, 128, v0\ns_and_saveexec_b64 s[{sEX}:{sEX+1}], vcc")
        e(f"ds_read_b128 {V(16,4)}, {V(vt[1])} offset:{4096*k}\ns_waitcnt lgkmcnt(0)")
        e(f"global_store_dwordx4 {V(vt[0])}, {V(16,4)}, s[{sWS}:{sWS+1}]\nv_add_u32 {V(vt[0])}, 4096, {V(vt[0])}\ns_waitcnt vmcnt(0)")
    e("s_endpgm")
H=lambda c: 16+16*(c%3)
T=lambda c: 64+16*(c%3)
G=112
B1=128
RR=152
XR=200; XU=206; OUT=220
O=lambda t,ot: 144+48*(t&1)+16*ot
NC=21
def G1(c):
    t,mt=divmod(c,3); d=V(H(c),16)
    return [f"v_mfma_f32_32x32x16_bf16 {d}, {A(w1f(mt,ks),4)}, {V(B1+4*ks,4)}, {d if ks else '0'}" for ks in range(6)]
def G2(c):
    t,mt=divmod(c,3); L=[]
    for u in range(2):
        for ot in range(3):
            d=A(O(t,ot),16)
            L.append(f"v_mfma_f32_32x32x16_bf16 {d}, {A(w2f(ot,mt,u),4)}, {V(G+4*u,4)}, {d if (mt or u) else '0'}")
    return L
def tz(c):
    L=[f"v_pk_fma_f32 {V(T(c)+i,2)}, {V(H(c)+i,2)}, {V(H(c)+i,2)}, s[{sAP}:{sAP+1}]" for i in range(0,16,2)]
    L+=[f"v_pk_mul_f32 {V(T(c)+i,2)}, {V(H(c)+i,2)}, {V(T(c)+i,2)} neg_lo:[1,0] neg_hi:[1,0]" for i in range(0,16,2)]
    return L
def ex(c): return [f"v_exp_f32 {V(T(c)+i)}, {V(T(c)+i)}" for i in range(16)]
def dd(c): return [f"v_pk_fma_f32 {V(T(c)+i,2)}, {V(T(c)+i,2)}, s[{sSC}:{sSC+1}], s[{sSC}:{sSC+1}]" for i in range(0,16,2)]
def rc(c): return [f"v_rcp_f32 {V(T(c)+i)}, {V(T(c)+i)}" for i in range(16)]
def gg(c): return [f"v_pk_mul_f32 {V(T(c)+i,2)}, {V(H(c)+i,2)}, {V(T(c)+i,2)}" for i in range(0,16,2)]
def cv(c): return [f"v_cvt_pk_bf16_f32 {V(G+i)}, {V(T(c)+2*i)}, {V(T(c)+2*i+1)}" for i in range(8)]
def b1r(t): return [f"ds_read_b128 {V(B1+4*ks,4)}, {V(vH1R)} offset:{ks*2*HC+512*t}" for ks in range(6)]
def xw(t): return [f"ds_write_b128 {V(vXW)}, {A(O(t,ot)+4*i,4)} offset:{(4*ot+i)*16+XB*(t&1)}" for ot in range(3) for i in range(4)]
def xr(t):
    L=[]
    for pc in range(3):
        for src in range(4):
            ad=[vRA0,vRA1][t&1] if pc<2 else [vRB0,vRB1][t&1]
            L.append(f"ds_read_b128 {V(RR+16*pc+4*src,4)}, {V(ad)} offset:{src*XW+(192 if pc==1 else 0)}")
    return L
def xld(t): return [f"buffer_load_dwordx4 {V(XR,4)}, {V(vGA)}, {srd(sXS)}, s{sTR+t} offen", f"buffer_load_dwordx2 {V(XR+4,2)}, {V(vGB)}, {srd(sXS)}, s{sTR+t} offen offset:1024"]
def unp(t):
    L=[]
    for d in range(6):
        L.append(f"v_lshlrev_b32 {V(XU+2*d)}, 16, {V(XR+d)}")
        L.append(f"v_and_b32 {V(XU+2*d+1)}, s{sT0}, {V(XR+d)}")
    return L
def adds(t):
    L=[]
    for st in range(4):
        for pc in range(3):
            for h in range(2):
                r=lambda src: V(RR+16*pc+4*src+2*h,2)
                if st==0: L.append(f"v_pk_add_f32 {r(0)}, {r(0)}, {r(1)}")
                if st==1: L.append(f"v_pk_add_f32 {r(2)}, {r(2)}, {r(3)}")
                if st==2: L.append(f"v_pk_add_f32 {r(0)}, {r(0)}, {V(XU+4*pc+2*h,2)}")
                if st==3: L.append(f"v_pk_add_f32 {r(0)}, {r(0)}, {r(2)}")
    return L
def cvo(t): return [f"v_cvt_pk_bf16_f32 {V(OUT+2*pc+h)}, {V(RR+16*pc+2*h)}, {V(RR+16*pc+2*h+1)}" for pc in range(3) for h in range(2)]
def sto(t): return [f"buffer_store_dwordx4 {V(OUT,4)}, {V(vGA)}, {srd(sOS)}, s{sTR+t} offen {STORE_MOD}", f"buffer_store_dwordx2 {V(OUT+4,2)}, {V(vGB)}, {srd(sOS)}, s{sTR+t} offen offset:1024 {STORE_MOD}"]
e(f"s_mov_b32 s{sT0}, 0xffff0000")
for x in b1r(0): e(x)
ok=lambda c: 0<=c<NC
okt=lambda t: 0<=t<7
def cost(x): return 8 if x.startswith(('v_exp','v_rcp')) else 4
for c in range(-1,28):
    P=[]
    if ok(c): P+=tz(c)
    if ok(c-1): P+=dd(c-1)
    if ok(c-2): P+=gg(c-2)
    if c%3==0 and okt(c//3-3): P+=adds(c//3-3)
    if P: e(";@align8")
    for x in P: e(x)
    M=[]; F=[]; S=[[] for _ in range(12)]
    if ok(c+1): M+=G1(c+1)
    if ok(c-2): F+=cv(c-2)
    if c%3==0 and okt(c//3-3): F+=cvo(c//3-3)
    g2=G2(c-2) if ok(c-2) else []
    if ok(c): F+=ex(c)
    if ok(c-1): F+=rc(c-1)
    if c%3==2 and okt((c-8)//3): F+=unp((c-8)//3)
    if c%3==1:
        t=(c-1)//3
        if okt(t+1):
            for k,x in enumerate(b1r(t+1)): S[6+k].append(x)
        t=(c-7)//3
        if okt(t):
            S[0]+=["s_waitcnt lgkmcnt(0)","s_barrier"]
            for k,x in enumerate(xr(t)[:6]): S[k].append(x)
    if c%3==2:
        t=(c-5)//3
        if okt(t):
            for k,x in enumerate(xw(t)[:6]): S[2*k].append(x)
        if okt(t-1):
            for k,x in enumerate(xr(t-1)[6:]): S[2*k+1].append(x)
    if c%3==0:
        t=(c-6)//3
        if okt(t):
            for k,x in enumerate(xw(t)[6:]): S[2*k].append(x)
            for k,x in enumerate(xld(t)): S[9+2*k].append(x)
        if okt(t-1):
            for k,x in enumerate(sto(t-1)): S[5+2*k].append(x)
    if not M and g2:
        n=8+(6 if (c%3==0 and okt(c//3-3)) else 0)
        for x in F[:n]: e(x)
        F=F[n:]
    M+=g2
    nm=len(M)
    if nm==0:
        for x in F: e(x)
        for sl in S:
            for x in sl: e(x)
        continue
    per=12//nm
    fi=0
    for k,m in enumerate(M):
        e(m)
        for sl in S[k*per:(k+1)*per]:
            for x in sl: e(x)
        b=0
        while fi<len(F) and (b+cost(F[fi])<=24 or k==nm-1):
            b+=cost(F[fi]); e(F[fi]); fi+=1
    if c in (1,7,13,19,22): stamp(f"M{c}")
e("s_waitcnt vmcnt(0)")
stamp("end")
if STAMPS:
    e(f"v_mov_b32 {V(16)}, 0")
    for k in range(stampn[0]):
        e(f"s_sub_u32 s{sT1}, s{70+2*k}, s70\nv_writelane_b32 {V(16)}, s{sT1}, {k}")
    e(f"v_writelane_b32 {V(16)}, s70, 63")
    e(f"s_lshl_b32 s{sT1}, s2, 10\nv_lshl_add_u32 {V(17)}, v0, 2, s{sT1}\nglobal_store_dword {V(17)}, {V(16)}, s[{sWS}:{sWS+1}]\ns_waitcnt vmcnt(0)")
e("L_end:\ns_endpgm")
p.finalize()
p.align_fix()
hdr=open('cdna_kernels/'+NAME+'.s.ref').read().split('\n')
head=[l for l in hdr if l.startswith(';') and '@launch' not in l]
txt='\n'.join(head)+f"\n; @launch grid=(224,1,1) block=(256,1,1) lds={LDS_TOTAL}\n"
txt+=f""".amdgcn_target "amdgcn-amd-amdhsa--gfx950"
.text
.globl {NAME}_kernel
.p2align 8
.type {NAME}_kernel,@function
{NAME}_kernel:
"""+p.text()+f"""; pad so that the code prefetch stays inside the text section
.fill 8192, 4, 0xbf810000
.section .rodata,"a"
.p2align 6
.amdhsa_kernel {NAME}_kernel
  .amdhsa_next_free_vgpr 512
  .amdhsa_next_free_sgpr 102
  .amdhsa_accum_offset 256
  .amdhsa_group_segment_fixed_size 0
  .amdhsa_kernarg_size 64
  .amdhsa_user_sgpr_count 2
  .amdhsa_user_sgpr_kernarg_segment_ptr 1
  .amdhsa_system_sgpr_workgroup_id_x 1
  .amdhsa_float_denorm_mode_32 3
.end_amdhsa_kernel
"""
out=sys.argv[1] if len(sys.argv)>1 else 'cdna_kernels/'+NAME+'.s'
open(out,'w').write(txt)
if STAMPS: open(out+'.stamps','w').write(' '.join(stampnames))
assert all((T_*4682)>>16==T_//14 for T_ in range(224))
assert all((l*43)>>9==l//12 for l in range(64))
assert all((l*52)>>8==l//5 for l in range(60))
assert all((u*171)>>11==u//12 for u in range(192))
assert all((u*171)>>12==u//24 for u in range(128,192))
```

```python
import math, struct, sys, os
from asmlib import *
NAME="standalone__modern_conv_block_replknet__vision"
def f2u(x): return struct.unpack('<I', struct.pack('<f', x))[0]
KK=2*math.sqrt(2/math.pi)*math.log2(math.e)
SC=(KK*0.044715)**(1/3)
AP=KK/SC
DBG=os.environ.get('DBG','')
STAMPS=os.environ.get('STAMPS','')=='1'
STORE_MOD=os.environ.get('STORE_MOD','')
WST=0; WSTW=18432
PL=73728; PLC=720; PLG=5776
TB=143040; TBW=4032; TBC=336
ST=155648
HB=112640; HC=3584
XB=51968; XW=12992
LDS_TOTAL=163840
ROW=43008
XBYTES=224*224*96*2
sXS,sDL,sDS,sW1,sW2,sOS=24,28,32,36,40,44
sWV,sY0,sX0=48,49,50
sAP,sSC=52,54
sPLO,sPHI=56,57
sEX=58
sTR=60
sT0,sT1,sT2,sT3=67,68,69,51
sWS=20
stampn=[0]
stampnames=[]
p=Prog(); e=p.e
def srd(s): return f"s[{s}:{s+3}]"
def V(a,n=1): return f"v{a}" if n==1 else f"v[{a}:{a+n-1}]"
def A(a,n=1): return f"a{a}" if n==1 else f"a[{a}:{a+n-1}]"
def stamp(name):
    if STAMPS:
        k=stampn[0]; stampn[0]+=1; stampnames.append(name)
        e(f"s_memtime s[{70+2*k}:{71+2*k}]\ns_waitcnt lgkmcnt(0)")
vLANE=1; vBR=2; vHW=3; vSTA=4; vW1R=5; vW2R=6; vH1R=7; vXW=8; vRA0=9; vRB0=10; vRA1=11; vRB1=12; vGA=13; vGB=14; vW2D=15
vt=[240+i for i in range(16)]
XS=16
PT=96
DW=128
DU=136
WN=144
AOV=176
ACC=16
BRING=112
S1=184; S2=188
HP=192
def afrag(cl,f):
    k=cl*2+f
    return (('a',72+4*k) if k<46 else ('v',AOV+4*(k-46)))
def R(t,n): return (A if t[0]=='a' else V)(t[1],n)

e(f"s_cmp_ge_u32 s2, 224\ns_cbranch_scc1 L_end")
stamp("start")
for k,s in enumerate([sXS,sDL,sDS,sW1,sW2,sOS]):
    e(f"s_load_dwordx2 s[{s}:{s+1}], s[0:1], {8*k}")
if DBG or STAMPS: e(f"s_load_dwordx2 s[{sWS}:{sWS+1}], s[0:1], 56")
e("s_getpc_b64 s[6:7]")
e(f"v_lshlrev_b32 {V(vt[0])}, 7, v0")
e(f"global_load_dword {V(vt[15])}, {V(vt[0])}, s[6:7]")
e(f"v_and_b32 {V(vLANE)}, 63, v0")
e(f"v_lshrrev_b32 {V(vt[1])}, 6, v0")
e(f"v_min_u32 {V(vt[2])}, 59, {V(vLANE)}")
e(f"v_readfirstlane_b32 s{sWV}, {V(vt[1])}")
e(f"s_and_b32 s{sT0}, s2, 7\ns_mul_i32 s{sT0}, s{sT0}, 28\ns_lshr_b32 s{sT1}, s2, 3\ns_add_u32 s{sT0}, s{sT0}, s{sT1}")
e(f"s_mul_i32 s{sT1}, s{sT0}, 4682\ns_lshr_b32 s{sT1}, s{sT1}, 16")
e(f"s_mul_i32 s{sY0}, s{sT1}, 14\ns_sub_u32 s{sT0}, s{sT0}, s{sY0}")
e(f"s_lshl_b32 s{sX0}, s{sT0}, 4")
for s,n in [(sXS,XBYTES),(sDL,9*192),(sDS,25*192),(sW1,96*384*2),(sW2,96*384*2),(sOS,XBYTES)]:
    e(f"s_mov_b32 s{s+2}, {n}\ns_mov_b32 s{s+3}, 0x20000")
e(f"v_mul_u32_u24 {V(vt[3])}, 43, {V(vt[2])}\nv_lshrrev_b32 {V(vt[3])}, 9, {V(vt[3])}")
e(f"v_mul_u32_u24 {V(vt[4])}, 12, {V(vt[3])}\nv_sub_u32 {V(vt[4])}, {V(vt[2])}, {V(vt[4])}")
e(f"v_mul_u32_u24 {V(vt[5])}, 52, {V(vt[2])}\nv_lshrrev_b32 {V(vt[5])}, 8, {V(vt[5])}")
e(f"v_mul_u32_u24 {V(vt[6])}, 5, {V(vt[5])}\nv_sub_u32 {V(vt[6])}, {V(vt[2])}, {V(vt[6])}")
e(f"s_mul_i32 s{sT1}, s{sWV}, 48")
e(f"v_lshl_add_u32 {V(vt[7])}, {V(vt[5])}, 2, s{sT1}")
e(f"v_mul_u32_u24 {V(vt[8])}, 960, {V(vt[6])}\nv_add_u32 {V(vt[8])}, {V(vt[8])}, {V(vt[7])}")
e(f"v_mul_u32_u24 {V(vt[9])}, 576, {V(vt[6])}\nv_add_u32 {V(vt[9])}, {V(vt[9])}, {V(vt[7])}\nv_subrev_u32 {V(vt[9])}, 576, {V(vt[9])}")
e(f"s_add_u32 s{sT1}, s{sY0}, s{sWV}\ns_mul_i32 s{sT1}, s{sT1}, {ROW}\ns_mul_i32 s{sT2}, s{sX0}, 192\ns_add_u32 s{sT1}, s{sT1}, s{sT2}\ns_sub_u32 s{sT1}, s{sT1}, {2*ROW+384}")
e(f"v_mul_u32_u24 {V(vt[10])}, 768, {V(vt[3])}\nv_lshl_add_u32 {V(vt[10])}, {V(vt[4])}, 4, {V(vt[10])}\nv_add_u32 {V(vt[10])}, s{sT1}, {V(vt[10])}")
e(f"v_add_u32 {V(vt[11])}, 384, {V(vt[10])}")
e(f"s_cmp_eq_u32 s{sT0}, 0\ns_cselect_b32 s{sT2}, 0, 63\ns_cmp_eq_u32 s{sT0}, 13\ns_cselect_b32 s{sT3}, 4, 63")
e(f"v_bfrev_b32 {V(vt[12])}, 1")
e(f"v_cmp_eq_u32 vcc, s{sT2}, {V(vt[3])}\nv_cndmask_b32 {V(vt[10])}, {V(vt[10])}, {V(vt[12])}, vcc")
e(f"v_cmp_eq_u32 vcc, s{sT3}, {V(vt[3])}\nv_cndmask_b32 {V(vt[11])}, {V(vt[11])}, {V(vt[12])}, vcc")
e(f"s_cmp_lt_u32 s{sWV}, 2\ns_cselect_b32 s{sT3}, {4*ROW}, 0x40000000\ns_cselect_b64 s[{sEX}:{sEX+1}], -1, 0")
e("s_waitcnt lgkmcnt(0)")
stamp("kernarg")
for dx in range(5): e(f"buffer_load_dword {V(DW+dx)}, {V(vt[8])}, {srd(sDS)}, 0 offen offset:{192*dx}")
for i in range(3): e(f"buffer_load_dword {V(DW+5+i)}, {V(vt[9])}, {srd(sDL)}, 0 offen offset:{192*i}")
for k in range(5):
    if k>0:
        inc = f"{4*ROW}" if k<4 else f"s{sT3}"
        e(f"v_add_u32 {V(vt[10])}, {inc}, {V(vt[10])}\nv_add_u32 {V(vt[11])}, {inc}, {V(vt[11])}")
    for i in range(4):
        e(f"buffer_load_dwordx4 {V(XS+16*k+4*i,4)}, {V(vt[10+(i>>1)])}, {srd(sXS)}, 0 offen offset:{192*(i&1)}")
for i in range(3):
    e(f"v_add_u32 {V(vt[13])}, {64*i}, {V(vLANE)}")
    e(f"v_mul_u32_u24 {V(vt[14])}, 171, {V(vt[13])}\nv_lshrrev_b32 {V(vt[14])}, 11, {V(vt[14])}")
    e(f"v_mul_u32_u24 {V(vt[14])}, 576, {V(vt[14])}\nv_lshl_add_u32 {V(vt[7+i])}, {V(vLANE)}, 4, {V(vt[14])}")
e(f"s_mul_i32 s{sT1}, s{sWV}, 192\ns_mul_i32 s{sT2}, s{sWV}, {WSTW}")
for g in range(6):
    e(f"s_mov_b32 m0, s{sT2}")
    for i in range(3):
        e(f"buffer_load_dwordx4 {V(vt[7+i])}, {srd(sW1)}, s{sT1} offen offset:{1024*i} lds")
    if g<5: e(f"s_add_u32 s{sT1}, s{sT1}, {16*768}\ns_add_u32 s{sT2}, s{sT2}, 3072")
stamp("issued")
e(f"s_mov_b32 s{sAP}, {f2u(AP):#x}\ns_mov_b32 s{sAP+1}, {f2u(AP):#x}\ns_mov_b32 s{sSC}, {f2u(SC):#x}\ns_mov_b32 s{sSC+1}, {f2u(SC):#x}")
e(f"s_mov_b32 s{sPLO}, 0x05040100\ns_mov_b32 s{sPHI}, 0x07060302")
e(f"s_lshr_b32 s{sT1}, s{sWV}, 1\ns_mul_i32 s{sT1}, s{sT1}, 80\ns_and_b32 s{sT2}, s{sWV}, 1\ns_lshl_b32 s{sT2}, s{sT2}, 3\ns_add_u32 s{sT1}, s{sT1}, s{sT2}\ns_add_u32 s{sT1}, s{sT1}, {PL}")
e(f"v_mul_u32_u24 {V(vt[10])}, {PLG}, {V(vt[4])}\nv_lshl_add_u32 {V(vt[10])}, {V(vt[3])}, 4, {V(vt[10])}\nv_add_u32 {V(vt[10])}, s{sT1}, {V(vt[10])}")
vPW=vt[10]
e(f"s_mul_i32 s{sT1}, s{sWV}, {TBW}\ns_add_u32 s{sT1}, s{sT1}, {TB}")
e(f"v_mul_u32_u24 {V(vt[12])}, {TBC}, {V(vt[5])}\nv_add_u32 {V(vt[12])}, s{sT1}, {V(vt[12])}\nv_lshl_add_u32 {V(vt[11])}, {V(vt[6])}, 6, {V(vt[12])}")
vTW=vt[11]; vTZ=vt[12]
e(f"v_lshrrev_b32 {V(vt[0])}, 4, {V(vLANE)}\nv_and_b32 {V(vt[1])}, 3, {V(vLANE)}\nv_bfe_u32 {V(vt[2])}, {V(vLANE)}, 2, 2")
e(f"s_movk_i32 s{sT2}, 0x3120\ns_movk_i32 s{sT3}, 0x5320")
e(f"v_lshlrev_b32 {V(vt[3])}, 2, {V(vt[0])}\nv_bfe_u32 {V(vt[3])}, s{sT2}, {V(vt[3])}, 4")
e(f"v_lshlrev_b32 {V(vt[4])}, 2, {V(vt[2])}\nv_bfe_u32 {V(vt[4])}, s{sT3}, {V(vt[4])}, 4")
e(f"v_lshlrev_b32 {V(vt[5])}, 1, {V(vt[3])}\nv_sub_u32 {V(vt[5])}, {V(vt[5])}, {V(vt[2])}")
e(f"v_mov_b32 {V(vt[9])}, 320")
for a in range(2):
    if a: e(f"v_add_u32 {V(vt[5])}, 1, {V(vt[5])}")
    e(f"v_lshlrev_b32 {V(vt[6])}, 6, {V(vt[5])}\nv_lshl_add_u32 {V(vt[6])}, {V(vt[1])}, 4, {V(vt[6])}")
    e(f"v_cmp_gt_u32 vcc, 5, {V(vt[5])}\nv_cndmask_b32 {V(vt[6])}, {V(vt[9])}, {V(vt[6])}, vcc")
    e(f"v_add_u32 {V(vt[7+a])}, s{sT1}, {V(vt[6])}")
vAR=[vt[7],vt[8]]
e(f"s_mul_i32 s{sT1}, s{sWV}, {3*PLG}\ns_add_u32 s{sT1}, s{sT1}, {PL}")
e(f"v_add_u32 {V(vt[5])}, {V(vt[3])}, {V(vt[4])}\nv_mul_u32_u24 {V(vt[5])}, 5, {V(vt[5])}\nv_add_u32 {V(vt[5])}, {V(vt[5])}, {V(vt[1])}\nv_lshl_add_u32 {V(vBR)}, {V(vt[5])}, 4, s{sT1}")
e(f"s_mul_i32 s{sT1}, s{sWV}, {3*HC}\ns_add_u32 s{sT1}, s{sT1}, {HB}")
e(f"v_lshl_add_u32 {V(vt[5])}, {V(vt[4])}, 1, {V(vt[0])}")
e(f"v_lshrrev_b32 {V(vt[6])}, 2, {V(vt[5])}\nv_xor_b32 {V(vt[6])}, {V(vt[6])}, {V(vt[5])}\nv_and_b32 {V(vt[6])}, 1, {V(vt[6])}")
e(f"v_lshl_add_u32 {V(vt[6])}, {V(vt[6])}, 2, {V(vt[1])}\nv_lshl_add_u32 {V(vt[6])}, {V(vt[6])}, 4, s{sT1}")
e(f"v_lshrrev_b32 {V(vt[5])}, 1, {V(vt[5])}\nv_lshl_add_u32 {V(vHW)}, {V(vt[5])}, 9, {V(vt[6])}")
e(f"v_lshlrev_b32 {V(vSTA)}, 4, {V(vLANE)}\nv_add_u32 {V(vSTA)}, {ST}, {V(vSTA)}")
e(f"s_mul_i32 s{sT1}, s{sWV}, {WSTW}")
e(f"v_and_b32 {V(vt[5])}, 1, {V(vt[0])}\nv_lshlrev_b32 {V(vt[5])}, 5, {V(vt[5])}\nv_lshl_add_u32 {V(vt[5])}, {V(vt[1])}, 3, {V(vt[5])}\nv_add_u32 {V(vt[5])}, s{sT1}, {V(vt[5])}")
e(f"v_lshrrev_b32 {V(vt[6])}, 5, {V(vLANE)}")
e(f"v_lshl_add_u32 {V(vt[9])}, {V(vt[6])}, 3, {V(vt[2])}\nv_mul_u32_u24 {V(vt[9])}, 192, {V(vt[9])}\nv_add_u32 {V(vW1R)}, {V(vt[9])}, {V(vt[5])}")
e(f"v_lshl_add_u32 {V(vt[9])}, {V(vt[6])}, 2, {V(vt[2])}\nv_mul_u32_u24 {V(vt[9])}, 192, {V(vt[9])}\nv_add_u32 {V(vW2R)}, {V(vt[9])}, {V(vt[5])}")
e(f"v_lshl_add_u32 {V(vW2D)}, {V(vLANE)}, 4, s{sT1}")
e(f"v_and_b32 {V(vt[9])}, 31, {V(vLANE)}\nv_mul_u32_u24 {V(vt[13])}, {HC}, {V(vt[6])}\nv_lshl_add_u32 {V(vt[13])}, {V(vt[9])}, 4, {V(vt[13])}\nv_add_u32 {V(vH1R)}, {HB}, {V(vt[13])}")
e(f"s_mul_i32 s{sT1}, s{sWV}, {XW}")
e(f"v_lshrrev_b32 {V(vt[13])}, 3, {V(vt[9])}\nv_mul_u32_u24 {V(vt[13])}, 204, {V(vt[13])}\nv_and_b32 {V(vt[14])}, 7, {V(vLANE)}\nv_mul_u32_u24 {V(vt[14])}, 25, {V(vt[14])}\nv_add_u32 {V(vt[13])}, {V(vt[13])}, {V(vt[14])}")
e(f"v_mul_u32_u24 {V(vt[14])}, 12, {V(vt[6])}\nv_add_u32 {V(vt[13])}, {V(vt[13])}, {V(vt[14])}\nv_lshl_add_u32 {V(vXW)}, {V(vt[13])}, 4, s{sT1}")
e(f"s_mul_i32 s{sT1}, s{sWV}, 50")
e(f"v_mul_u32_u24 {V(vt[5])}, 43, {V(vLANE)}\nv_lshrrev_b32 {V(vt[5])}, 9, {V(vt[5])}")
e(f"v_mul_u32_u24 {V(vt[6])}, 12, {V(vt[5])}\nv_sub_u32 {V(vt[6])}, {V(vLANE)}, {V(vt[6])}")
def slotaddr(dst0,dst1,xl,g):
    e(f"v_and_b32 {V(vt[13])}, 3, {V(xl)}\nv_mul_u32_u24 {V(vt[13])}, 204, {V(vt[13])}\nv_lshrrev_b32 {V(vt[14])}, 2, {V(xl)}\nv_mul_u32_u24 {V(vt[14])}, 25, {V(vt[14])}")
    e(f"v_add3_u32 {V(vt[13])}, {V(vt[13])}, {V(vt[14])}, {V(g)}\nv_add_lshl_u32 {V(dst0)}, {V(vt[13])}, s{sT1}, 4\nv_add_u32 {V(dst1)}, {XB}, {V(dst0)}")
slotaddr(vRA0,vRA1,vt[5],vt[6])
e(f"v_add_u32 {V(vt[9])}, 128, {V(vLANE)}\nv_mul_u32_u24 {V(vt[5])}, 171, {V(vt[9])}\nv_lshrrev_b32 {V(vt[5])}, 12, {V(vt[5])}")
e(f"v_mul_u32_u24 {V(vt[6])}, 24, {V(vt[5])}\nv_sub_u32 {V(vt[6])}, {V(vt[9])}, {V(vt[6])}")
e(f"v_and_b32 {V(vt[9])}, 1, {V(vt[6])}\nv_mul_u32_u24 {V(vt[9])}, 12, {V(vt[9])}\nv_lshrrev_b32 {V(vt[6])}, 1, {V(vt[6])}\nv_add_u32 {V(vt[6])}, {V(vt[6])}, {V(vt[9])}")
slotaddr(vRB0,vRB1,vt[5],vt[6])
e(f"s_and_b32 s{sT1}, s{sWV}, 1\ns_lshl_b32 s{sT1}, s{sT1}, 3\ns_add_u32 s{sT1}, s{sT1}, s{sX0}\ns_mul_i32 s{sT1}, s{sT1}, 192")
e(f"v_lshl_add_u32 {V(vGA)}, {V(vLANE)}, 4, s{sT1}\nv_lshl_add_u32 {V(vGB)}, {V(vLANE)}, 3, s{sT1}")
e(f"s_lshr_b32 s{sT1}, s{sWV}, 1\ns_xor_b32 s{sT2}, s{sT1}, 1\ns_add_u32 s{sT1}, s{sT1}, s{sY0}\ns_add_u32 s{sT2}, s{sT2}, s{sY0}\ns_mul_i32 s{sT1}, s{sT1}, {ROW}\ns_mul_i32 s{sT2}, s{sT2}, {ROW}")
for t in range(7):
    e(f"s_add_u32 s{sTR+t}, s{sT2 if (t>>1)&1 else sT1}, {2*t*ROW}")
for z in (WN+3,WN+7,WN+8,WN+12): e(f"v_mov_b32 {V(z)}, 0")
for i in range(4): e(f"v_mov_b32 {V(PT+i)}, 0")
e(f"ds_write_b128 {V(vTZ)}, {V(PT,4)} offset:320")
for rho in range(2):
    for i in range(8):
        e(f"v_lshlrev_b32 {V(DU+i)}, 16, {V(DW+i)}" if rho==0 else f"v_and_b32 {V(DU+i)}, 0xffff0000, {V(DW+i)}")
    if rho==0: stamp("dw")
    for i in range(3): e(f"v_add_f32 {V(DU+1+i)}, {V(DU+1+i)}, {V(DU+5+i)}")
    w=[V(DU+i) for i in range(5)]
    E=[(w[0],w[1]),(w[2],w[3]),(w[4],'0')]; O=[('0',w[0]),(w[1],w[2]),(w[3],w[4])]
    if rho==1: e("s_waitcnt lgkmcnt(0)")
    for k in range(3):
        e(f"v_cvt_pk_bf16_f32 {V(WN+k)}, {E[k][0]}, {E[k][1]}")
        e(f"v_cvt_pk_bf16_f32 {V(WN+4+k)}, {O[k][0]}, {O[k][1]}")
        e(f"v_cvt_pk_bf16_f32 {V(WN+9+k)}, {E[k][0]}, {E[k][1]}")
        e(f"v_cvt_pk_bf16_f32 {V(WN+13+k)}, {O[k][0]}, {O[k][1]}")
    for ox in range(4): e(f"ds_write_b128 {V(vTW)}, {V(WN+4*ox,4)} offset:{16*ox}")
    e("s_waitcnt lgkmcnt(0)")
    for cp in range(12):
        for f in range(2):
            t=afrag(2*cp+rho,f)
            for a in range(2):
                e(f"ds_read_b64 {R((t[0],t[1]+2*a),2)}, {V(vAR[a])} offset:{cp*TBC+8*f}")
stamp("table")
for k in range(5):
    pt=PT+16*(k&1)
    X=lambda i,d: V(XS+16*k+4*i+d)
    for d in range(4):
        for hi in range(2):
            j=2*d+hi
            sel=sPHI if hi else sPLO
            e(f"v_perm_b32 {V(pt+2*j)}, {X(1,d)}, {X(0,d)}, s{sel}")
            e(f"v_perm_b32 {V(pt+2*j+1)}, {X(3,d)}, {X(2,d)}, s{sel}")
    if k==4: e(f"s_mov_b64 exec, s[{sEX}:{sEX+1}]")
    for j in range(8):
        e(f"ds_write_b64 {V(vPW)}, {V(pt+2*j,2)} offset:{j*PLC+160*k}")
    if k==4: e("s_mov_b64 exec, -1")
stamp("planar")
e("s_waitcnt vmcnt(0)")
stamp("w1arr")
def w1f(mt,ks): return 4*(mt*6+ks)
def w2f(ot,mt,u): return 72+4*(ot*6+mt*2+u)
for mt in range(3):
    for ks in range(6):
        for h in range(2):
            e(f"ds_read_b64_tr_b16 {A(w1f(mt,ks)+2*h,2)}, {V(vW1R)} offset:{(16*ks+4*h)*192+64*mt}")
e("s_waitcnt lgkmcnt(0)")
e(f"s_mul_i32 s{sT2}, s{sWV}, {WSTW}\ns_mov_b32 s{sT1}, 0")
for g in range(5):
    e(f"s_mov_b32 m0, s{sT2}")
    for i in range(4 if g<4 else 2):
        e(f"buffer_load_dwordx4 {V(vW2D)}, {srd(sW2)}, s{sT1} offen offset:{1024*i} lds")
    if g<4: e(f"s_add_u32 s{sT1}, s{sT1}, 4096\ns_add_u32 s{sT2}, s{sT2}, 4096")
e("s_barrier")
stamp("bar1")
def bread(k):
    cl,f=k>>1,k&1
    return f"ds_read_b128 {V(BRING+4*(k%8),4)}, {V(vBR)} offset:{(cl>>3)*PLG+(cl&7)*PLC+16*f}"
for k in range(7): e(bread(k))
for k in range(48):
    cl,f=k>>1,k&1
    d=V(ACC+4*cl,4)
    e(f"s_waitcnt lgkmcnt({min(6,47-k)})")
    e(f"v_mfma_f32_16x16x32_bf16 {d}, {R(afrag(cl,f),4)}, {V(BRING+4*(k%8),4)}, {d if f else '0'}")
    if k+7<48: e(bread(k+7))
    c2=cl-3
    if c2>=1:
        for j in (2*f,2*f+1):
            e(f"v_add_f32 {V(S1+j)}, {V(ACC+j) if c2==1 else V(S1+j)}, {V(ACC+4*c2+j)}")
for cl in range(24):
    for h in range(2):
        a=V(ACC+4*cl+2*h,2)
        if cl==0: e(f"v_pk_mul_f32 {V(S2+2*h,2)}, {a}, {a}")
        else: e(f"v_pk_fma_f32 {V(S2+2*h,2)}, {a}, {a}, {V(S2+2*h,2)}")
for cl in range(21,24):
    for h in range(2): e(f"v_pk_add_f32 {V(S1+2*h,2)}, {V(S1+2*h,2)}, {V(ACC+4*cl+2*h,2)}")
e(f"s_lshl_b32 s{sT1}, s{sWV}, 11\nv_add_u32 {V(vt[0])}, s{sT1}, {V(vSTA)}")
e(f"ds_write_b128 {V(vt[0])}, {V(S1,4)}\nds_write_b128 {V(vt[0])}, {V(S2,4)} offset:1024")
e("s_waitcnt lgkmcnt(0)")
stamp("conv")
e("s_barrier")
SR=BRING
for w in range(4):
    for h in range(2): e(f"ds_read_b128 {V(SR+8*w+4*h,4)}, {V(vSTA)} offset:{2048*w+1024*h}")
e("s_waitcnt vmcnt(0)")
for ot in range(3):
    for mt in range(3):
        for u in range(2):
            for h in range(2):
                e(f"ds_read_b64_tr_b16 {A(w2f(ot,mt,u)+2*h,2)}, {V(vW2R)} offset:{(32*mt+16*u+8*h)*192+64*ot}")
for k in range(4):
    e(f"v_pk_add_f32 {V(SR+2*k,2)}, {V(SR+2*k,2)}, {V(SR+8+2*k,2)}")
    e(f"v_pk_add_f32 {V(SR+16+2*k,2)}, {V(SR+16+2*k,2)}, {V(SR+24+2*k,2)}")
for k in range(4):
    e(f"v_pk_add_f32 {V(SR+2*k,2)}, {V(SR+2*k,2)}, {V(SR+16+2*k,2)}")
inv=f"{f2u(1/96):#x}"
for j in range(4):
    e(f"v_mul_f32 {V(SR+j)}, {inv}, {V(SR+j)}")
    e(f"v_mul_f32 {V(SR+4+j)}, {inv}, {V(SR+4+j)}")
for j in range(4): e(f"v_fma_f32 {V(SR+4+j)}, -{V(SR+j)}, {V(SR+j)}, {V(SR+4+j)}")
for j in range(4): e(f"v_max_f32 {V(SR+4+j)}, 0, {V(SR+4+j)}")
for j in range(4): e(f"v_add_f32 {V(SR+4+j)}, {f2u(1e-5):#x}, {V(SR+4+j)}")
for j in range(4): e(f"v_rsq_f32 {V(SR+4+j)}, {V(SR+4+j)}")
for j in range(4): e(f"v_mul_f32 {V(SR+4+j)}, s{sSC}, {V(SR+4+j)}")
for j in range(4): e(f"v_mul_f32 {V(SR+j)}, -{V(SR+j)}, {V(SR+4+j)}")
e(";@align8")
for u in range(3):
    for cl in range(8*u,8*u+8):
        for h in range(2):
            a=V(ACC+4*cl+2*h,2)
            e(f"v_pk_fma_f32 {a}, {a}, {V(SR+4+2*h,2)}, {V(SR+2*h,2)}")
    for j in range(4):
        for d in range(4):
            e(f"v_cvt_pk_bf16_f32 {V(HP+16*u+4*j+d)}, {V(ACC+4*(8*u+2*d)+j)}, {V(ACC+4*(8*u+2*d+1)+j)}")
        e(f"ds_write_b128 {V(vHW)}, {V(HP+16*u+4*j,4)} offset:{u*HC+128*j}")
e("s_waitcnt lgkmcnt(0)")
stamp("ln")
e("s_barrier")
if DBG=='h':
    e(f"s_mul_i32 s{sT1}, s2, 43008\nv_lshlrev_b32 {V(vt[0])}, 4, v0\nv_add_u32 {V(vt[1])}, {HB}, {V(vt[0])}\nv_add_u32 {V(vt[0])}, s{sT1}, {V(vt[0])}")
    for k in range(11):
        if k==10: e(f"v_cmp_gt_u32 vcc, 128, v0\ns_and_saveexec_b64 s[{sEX}:{sEX+1}], vcc")
        e(f"ds_read_b128 {V(16,4)}, {V(vt[1])} offset:{4096*k}\ns_waitcnt lgkmcnt(0)")
        e(f"global_store_dwordx4 {V(vt[0])}, {V(16,4)}, s[{sWS}:{sWS+1}]\nv_add_u32 {V(vt[0])}, 4096, {V(vt[0])}\ns_waitcnt vmcnt(0)")
    e("s_endpgm")
H=lambda c: 16+16*(c%3)
T=lambda c: 64+16*(c%3)
G=112
B1=128
RR=152
XR=200; XU=206; OUT=220
O=lambda t,ot: 144+48*(t&1)+16*ot
NC=21
def G1(c):
    t,mt=divmod(c,3); d=V(H(c),16)
    return [f"v_mfma_f32_32x32x16_bf16 {d}, {A(w1f(mt,ks),4)}, {V(B1+4*ks,4)}, {d if ks else '0'}" for ks in range(6)]
def G2(c):
    t,mt=divmod(c,3); L=[]
    for u in range(2):
        for ot in range(3):
            d=A(O(t,ot),16)
            L.append(f"v_mfma_f32_32x32x16_bf16 {d}, {A(w2f(ot,mt,u),4)}, {V(G+4*u,4)}, {d if (mt or u) else '0'}")
    return L
def tz(c):
    L=[f"v_pk_fma_f32 {V(T(c)+i,2)}, {V(H(c)+i,2)}, {V(H(c)+i,2)}, s[{sAP}:{sAP+1}]" for i in range(0,16,2)]
    L+=[f"v_pk_mul_f32 {V(T(c)+i,2)}, {V(H(c)+i,2)}, {V(T(c)+i,2)} neg_lo:[1,0] neg_hi:[1,0]" for i in range(0,16,2)]
    return L
def ex(c): return [f"v_exp_f32 {V(T(c)+i)}, {V(T(c)+i)}" for i in range(16)]
def dd(c): return [f"v_pk_fma_f32 {V(T(c)+i,2)}, {V(T(c)+i,2)}, s[{sSC}:{sSC+1}], s[{sSC}:{sSC+1}]" for i in range(0,16,2)]
def rc(c): return [f"v_rcp_f32 {V(T(c)+i)}, {V(T(c)+i)}" for i in range(16)]
def gg(c): return [f"v_pk_mul_f32 {V(T(c)+i,2)}, {V(H(c)+i,2)}, {V(T(c)+i,2)}" for i in range(0,16,2)]
def cv(c): return [f"v_cvt_pk_bf16_f32 {V(G+i)}, {V(T(c)+2*i)}, {V(T(c)+2*i+1)}" for i in range(8)]
def b1r(t): return [f"ds_read_b128 {V(B1+4*ks,4)}, {V(vH1R)} offset:{ks*2*HC+512*t}" for ks in range(6)]
def xw(t): return [f"ds_write_b128 {V(vXW)}, {A(O(t,ot)+4*i,4)} offset:{(4*ot+i)*16+XB*(t&1)}" for ot in range(3) for i in range(4)]
def xr(t):
    L=[]
    for pc in range(3):
        for src in range(4):
            ad=[vRA0,vRA1][t&1] if pc<2 else [vRB0,vRB1][t&1]
            L.append(f"ds_read_b128 {V(RR+16*pc+4*src,4)}, {V(ad)} offset:{src*XW+(192 if pc==1 else 0)}")
    return L
def xld(t): return [f"buffer_load_dwordx4 {V(XR,4)}, {V(vGA)}, {srd(sXS)}, s{sTR+t} offen", f"buffer_load_dwordx2 {V(XR+4,2)}, {V(vGB)}, {srd(sXS)}, s{sTR+t} offen offset:1024"]
def unp(t):
    L=[]
    for d in range(6):
        L.append(f"v_lshlrev_b32 {V(XU+2*d)}, 16, {V(XR+d)}")
        L.append(f"v_and_b32 {V(XU+2*d+1)}, s{sT0}, {V(XR+d)}")
    return L
def adds(t):
    L=[]
    for st in range(4):
        for pc in range(3):
            for h in range(2):
                r=lambda src: V(RR+16*pc+4*src+2*h,2)
                if st==0: L.append(f"v_pk_add_f32 {r(0)}, {r(0)}, {r(1)}")
                if st==1: L.append(f"v_pk_add_f32 {r(2)}, {r(2)}, {r(3)}")
                if st==2: L.append(f"v_pk_add_f32 {r(0)}, {r(0)}, {V(XU+4*pc+2*h,2)}")
                if st==3: L.append(f"v_pk_add_f32 {r(0)}, {r(0)}, {r(2)}")
    return L
def cvo(t): return [f"v_cvt_pk_bf16_f32 {V(OUT+2*pc+h)}, {V(RR+16*pc+2*h)}, {V(RR+16*pc+2*h+1)}" for pc in range(3) for h in range(2)]
def sto(t): return [f"buffer_store_dwordx4 {V(OUT,4)}, {V(vGA)}, {srd(sOS)}, s{sTR+t} offen {STORE_MOD}", f"buffer_store_dwordx2 {V(OUT+4,2)}, {V(vGB)}, {srd(sOS)}, s{sTR+t} offen offset:1024 {STORE_MOD}"]
e(f"s_mov_b32 s{sT0}, 0xffff0000")
for x in b1r(0): e(x)
ok=lambda c: 0<=c<NC
okt=lambda t: 0<=t<7
def cost(x): return 8 if x.startswith(('v_exp','v_rcp')) else 4
DROP=os.environ.get('DROP','').split(',')
_e=e
def e(x):
    if any(d and x.startswith(d) for d in DROP): return
    _e(x)
for c in range(-1,28):
    P=[]
    if ok(c): P+=tz(c)
    if ok(c-1): P+=dd(c-1)
    if ok(c-2): P+=gg(c-2)
    if c%3==0 and okt(c//3-3): P+=adds(c//3-3)
    if P: e(";@align8")
    for x in P: e(x)
    M=[]; F=[]; S=[[] for _ in range(12)]
    if ok(c+1): M+=G1(c+1)
    if ok(c-2): F+=cv(c-2)
    if c%3==0 and okt(c//3-3): F+=cvo(c//3-3)
    g2=G2(c-2) if ok(c-2) else []
    if ok(c): F+=ex(c)
    if ok(c-1): F+=rc(c-1)
    if c%3==2 and okt((c-8)//3): F+=unp((c-8)//3)
    if c%3==1:
        t=(c-1)//3
        if okt(t+1):
            for k,x in enumerate(b1r(t+1)): S[6+k].append(x)
        t=(c-7)//3
        if okt(t):
            S[0]+=["s_waitcnt lgkmcnt(0)","s_barrier"]
            for k,x in enumerate(xr(t)[:6]): S[k].append(x)
    if c%3==2:
        t=(c-5)//3
        if okt(t):
            for k,x in enumerate(xw(t)[:6]): S[2*k].append(x)
        if okt(t-1):
            for k,x in enumerate(xr(t-1)[6:]): S[2*k+1].append(x)
    if c%3==0:
        t=(c-6)//3
        if okt(t):
            for k,x in enumerate(xw(t)[6:]): S[2*k].append(x)
            for k,x in enumerate(xld(t)): S[9+2*k].append(x)
        if okt(t-1):
            for k,x in enumerate(sto(t-1)): S[5+2*k].append(x)
    if not M and g2:
        n=8+(6 if (c%3==0 and okt(c//3-3)) else 0)
        for x in F[:n]: e(x)
        F=F[n:]
    M+=g2
    nm=len(M)
    if nm==0:
        for x in F: e(x)
        for sl in S:
            for x in sl: e(x)
        continue
    per=12//nm
    fi=0
    for k,m in enumerate(M):
        e(m)
        for sl in S[k*per:(k+1)*per]:
            for x in sl: e(x)
        b=0
        while fi<len(F) and (b+cost(F[fi])<=24 or k==nm-1):
            b+=cost(F[fi]); e(F[fi]); fi+=1
    if c in (1,7,13,19,22): stamp(f"M{c}")
e=_e
e("s_waitcnt vmcnt(0)")
stamp("end")
if STAMPS:
    e(f"v_mov_b32 {V(16)}, 0")
    for k in range(stampn[0]):
        e(f"s_sub_u32 s{sT1}, s{70+2*k}, s70\nv_writelane_b32 {V(16)}, s{sT1}, {k}")
    e(f"v_writelane_b32 {V(16)}, s70, 63")
    e(f"s_lshl_b32 s{sT1}, s2, 10\nv_lshl_add_u32 {V(17)}, v0, 2, s{sT1}\nglobal_store_dword {V(17)}, {V(16)}, s[{sWS}:{sWS+1}]\ns_waitcnt vmcnt(0)")
e("L_end:\ns_endpgm")
p.finalize()
p.align_fix()
hdr=open('cdna_kernels/'+NAME+'.s.ref').read().split('\n')
head=[l for l in hdr if l.startswith(';') and '@launch' not in l]
txt='\n'.join(head)+f"\n; @launch grid=(224,1,1) block=(256,1,1) lds={LDS_TOTAL}\n"
txt+=f""".amdgcn_target "amdgcn-amd-amdhsa--gfx950"
.text
.globl {NAME}_kernel
.p2align 8
.type {NAME}_kernel,@function
{NAME}_kernel:
"""+p.text()+f"""; pad so that the code prefetch stays inside the text section
.fill 8192, 4, 0xbf810000
.section .rodata,"a"
.p2align 6
.amdhsa_kernel {NAME}_kernel
  .amdhsa_next_free_vgpr 512
  .amdhsa_next_free_sgpr 102
  .amdhsa_accum_offset 256
  .amdhsa_group_segment_fixed_size 0
  .amdhsa_kernarg_size 64
  .amdhsa_user_sgpr_count 2
  .amdhsa_user_sgpr_kernarg_segment_ptr 1
  .amdhsa_system_sgpr_workgroup_id_x 1
  .amdhsa_float_denorm_mode_32 3
.end_amdhsa_kernel
"""
out=sys.argv[1] if len(sys.argv)>1 else 'cdna_kernels/'+NAME+'.s'
open(out,'w').write(txt)
if STAMPS: open(out+'.stamps','w').write(' '.join(stampnames))
assert all((T_*4682)>>16==T_//14 for T_ in range(224))
assert all((l*43)>>9==l//12 for l in range(64))
assert all((l*52)>>8==l//5 for l in range(60))
assert all((u*171)>>11==u//12 for u in range(192))
assert all((u*171)>>12==u//24 for u in range(128,192))
```

```python
import math, struct, sys, os
from asmlib import *
NAME="standalone__modern_conv_block_replknet__vision"
def f2u(x): return struct.unpack('<I', struct.pack('<f', x))[0]
KK=2*math.sqrt(2/math.pi)*math.log2(math.e)
SC=(KK*0.044715)**(1/3)
AP=KK/SC
DBG=os.environ.get('DBG','')
STAMPS=os.environ.get('STAMPS','')=='1'
STORE_MOD=os.environ.get('STORE_MOD','')
WST=0; WSTW=18432
PL=73728; PLC=720; PLG=5776
TB=143040; TBW=4032; TBC=336
ST=155648
HB=112640; HC=3584
XB=51968; XW=12992
LDS_TOTAL=163840
ROW=43008
XBYTES=224*224*96*2
sXS,sDL,sDS,sW1,sW2,sOS=24,28,32,36,40,44
sWV,sY0,sX0=48,49,50
sAP,sSC=52,54
sPLO,sPHI=56,57
sEX=58
sTR=60
sT0,sT1,sT2,sT3=67,68,69,51
sWS=20
stampn=[0]
stampnames=[]
p=Prog(); e=p.e
def srd(s): return f"s[{s}:{s+3}]"
def V(a,n=1): return f"v{a}" if n==1 else f"v[{a}:{a+n-1}]"
def A(a,n=1): return f"a{a}" if n==1 else f"a[{a}:{a+n-1}]"
PROBE=os.environ.get('PROBE','')
def stamp(name):
    if PROBE and name in ('start',PROBE):
        e(f"s_memrealtime s[{96 if name=='start' else 98}:{97 if name=='start' else 99}]\ns_waitcnt lgkmcnt(0)")
    if STAMPS:
        k=stampn[0]; stampn[0]+=1; stampnames.append(name)
        e(f"s_memtime s[{70+2*k}:{71+2*k}]\ns_waitcnt lgkmcnt(0)")
vLANE=1; vBR=2; vHW=3; vSTA=4; vW1R=5; vW2R=6; vH1R=7; vXW=8; vRA0=9; vRB0=10; vRA1=11; vRB1=12; vGA=13; vGB=14; vW2D=15
vt=[240+i for i in range(16)]
XS=16
PT=96
DW=128
DU=136
WN=144
AOV=176
ACC=16
BRING=112
S1=184; S2=188
HP=192
def afrag(cl,f):
    k=cl*2+f
    return (('a',72+4*k) if k<46 else ('v',AOV+4*(k-46)))
def R(t,n): return (A if t[0]=='a' else V)(t[1],n)

e(f"s_cmp_ge_u32 s2, 224\ns_cbranch_scc1 L_end")
stamp("start")
for k,s in enumerate([sXS,sDL,sDS,sW1,sW2,sOS]):
    e(f"s_load_dwordx2 s[{s}:{s+1}], s[0:1], {8*k}")
if DBG or STAMPS: e(f"s_load_dwordx2 s[{sWS}:{sWS+1}], s[0:1], 56")
e("s_getpc_b64 s[6:7]")
e(f"v_lshlrev_b32 {V(vt[0])}, 7, v0")
e(f"global_load_dword {V(vt[15])}, {V(vt[0])}, s[6:7]")
e(f"v_and_b32 {V(vLANE)}, 63, v0")
e(f"v_lshrrev_b32 {V(vt[1])}, 6, v0")
e(f"v_min_u32 {V(vt[2])}, 59, {V(vLANE)}")
e(f"v_readfirstlane_b32 s{sWV}, {V(vt[1])}")
e(f"s_and_b32 s{sT0}, s2, 7\ns_mul_i32 s{sT0}, s{sT0}, 28\ns_lshr_b32 s{sT1}, s2, 3\ns_add_u32 s{sT0}, s{sT0}, s{sT1}")
e(f"s_mul_i32 s{sT1}, s{sT0}, 4682\ns_lshr_b32 s{sT1}, s{sT1}, 16")
e(f"s_mul_i32 s{sY0}, s{sT1}, 14\ns_sub_u32 s{sT0}, s{sT0}, s{sY0}")
e(f"s_lshl_b32 s{sX0}, s{sT0}, 4")
for s,n in [(sXS,XBYTES),(sDL,9*192),(sDS,25*192),(sW1,96*384*2),(sW2,96*384*2),(sOS,XBYTES)]:
    e(f"s_mov_b32 s{s+2}, {n}\ns_mov_b32 s{s+3}, 0x20000")
e(f"v_mul_u32_u24 {V(vt[3])}, 43, {V(vt[2])}\nv_lshrrev_b32 {V(vt[3])}, 9, {V(vt[3])}")
e(f"v_mul_u32_u24 {V(vt[4])}, 12, {V(vt[3])}\nv_sub_u32 {V(vt[4])}, {V(vt[2])}, {V(vt[4])}")
e(f"v_mul_u32_u24 {V(vt[5])}, 52, {V(vt[2])}\nv_lshrrev_b32 {V(vt[5])}, 8, {V(vt[5])}")
e(f"v_mul_u32_u24 {V(vt[6])}, 5, {V(vt[5])}\nv_sub_u32 {V(vt[6])}, {V(vt[2])}, {V(vt[6])}")
e(f"s_mul_i32 s{sT1}, s{sWV}, 48")
e(f"v_lshl_add_u32 {V(vt[7])}, {V(vt[5])}, 2, s{sT1}")
e(f"v_mul_u32_u24 {V(vt[8])}, 960, {V(vt[6])}\nv_add_u32 {V(vt[8])}, {V(vt[8])}, {V(vt[7])}")
e(f"v_mul_u32_u24 {V(vt[9])}, 576, {V(vt[6])}\nv_add_u32 {V(vt[9])}, {V(vt[9])}, {V(vt[7])}\nv_subrev_u32 {V(vt[9])}, 576, {V(vt[9])}")
e(f"s_add_u32 s{sT1}, s{sY0}, s{sWV}\ns_mul_i32 s{sT1}, s{sT1}, {ROW}\ns_mul_i32 s{sT2}, s{sX0}, 192\ns_add_u32 s{sT1}, s{sT1}, s{sT2}\ns_sub_u32 s{sT1}, s{sT1}, {2*ROW+384}")
e(f"v_mul_u32_u24 {V(vt[10])}, 768, {V(vt[3])}\nv_lshl_add_u32 {V(vt[10])}, {V(vt[4])}, 4, {V(vt[10])}\nv_add_u32 {V(vt[10])}, s{sT1}, {V(vt[10])}")
e(f"v_add_u32 {V(vt[11])}, 384, {V(vt[10])}")
e(f"s_cmp_eq_u32 s{sT0}, 0\ns_cselect_b32 s{sT2}, 0, 63\ns_cmp_eq_u32 s{sT0}, 13\ns_cselect_b32 s{sT3}, 4, 63")
e(f"v_bfrev_b32 {V(vt[12])}, 1")
e(f"v_cmp_eq_u32 vcc, s{sT2}, {V(vt[3])}\nv_cndmask_b32 {V(vt[10])}, {V(vt[10])}, {V(vt[12])}, vcc")
e(f"v_cmp_eq_u32 vcc, s{sT3}, {V(vt[3])}\nv_cndmask_b32 {V(vt[11])}, {V(vt[11])}, {V(vt[12])}, vcc")
e(f"s_cmp_lt_u32 s{sWV}, 2\ns_cselect_b32 s{sT3}, {4*ROW}, 0x40000000\ns_cselect_b64 s[{sEX}:{sEX+1}], -1, 0")
e("s_waitcnt lgkmcnt(0)")
stamp("kernarg")
for dx in range(5): e(f"buffer_load_dword {V(DW+dx)}, {V(vt[8])}, {srd(sDS)}, 0 offen offset:{192*dx}")
for i in range(3): e(f"buffer_load_dword {V(DW+5+i)}, {V(vt[9])}, {srd(sDL)}, 0 offen offset:{192*i}")
for k in range(5):
    if k>0:
        inc = f"{4*ROW}" if k<4 else f"s{sT3}"
        e(f"v_add_u32 {V(vt[10])}, {inc}, {V(vt[10])}\nv_add_u32 {V(vt[11])}, {inc}, {V(vt[11])}")
    for i in range(4):
        e(f"buffer_load_dwordx4 {V(XS+16*k+4*i,4)}, {V(vt[10+(i>>1)])}, {srd(sXS)}, 0 offen offset:{192*(i&1)}")
if PROBE in ('x0','x4','dwa'):
    e('s_waitcnt vmcnt(20)'); stamp('dwa'); e('s_waitcnt vmcnt(16)'); stamp('x0'); e('s_waitcnt vmcnt(0)'); stamp('x4')
for i in range(3):
    e(f"v_add_u32 {V(vt[13])}, {64*i}, {V(vLANE)}")
    e(f"v_mul_u32_u24 {V(vt[14])}, 171, {V(vt[13])}\nv_lshrrev_b32 {V(vt[14])}, 11, {V(vt[14])}")
    e(f"v_mul_u32_u24 {V(vt[14])}, 576, {V(vt[14])}\nv_lshl_add_u32 {V(vt[7+i])}, {V(vLANE)}, 4, {V(vt[14])}")
e(f"s_mul_i32 s{sT1}, s{sWV}, 192\ns_mul_i32 s{sT2}, s{sWV}, {WSTW}")
for g in range(6):
    e(f"s_mov_b32 m0, s{sT2}")
    for i in range(3):
        e(f"buffer_load_dwordx4 {V(vt[7+i])}, {srd(sW1)}, s{sT1} offen offset:{1024*i} lds")
    if g<5: e(f"s_add_u32 s{sT1}, s{sT1}, {16*768}\ns_add_u32 s{sT2}, s{sT2}, 3072")
stamp("issued")
e(f"s_mov_b32 s{sAP}, {f2u(AP):#x}\ns_mov_b32 s{sAP+1}, {f2u(AP):#x}\ns_mov_b32 s{sSC}, {f2u(SC):#x}\ns_mov_b32 s{sSC+1}, {f2u(SC):#x}")
e(f"s_mov_b32 s{sPLO}, 0x05040100\ns_mov_b32 s{sPHI}, 0x07060302")
e(f"s_lshr_b32 s{sT1}, s{sWV}, 1\ns_mul_i32 s{sT1}, s{sT1}, 80\ns_and_b32 s{sT2}, s{sWV}, 1\ns_lshl_b32 s{sT2}, s{sT2}, 3\ns_add_u32 s{sT1}, s{sT1}, s{sT2}\ns_add_u32 s{sT1}, s{sT1}, {PL}")
e(f"v_mul_u32_u24 {V(vt[10])}, {PLG}, {V(vt[4])}\nv_lshl_add_u32 {V(vt[10])}, {V(vt[3])}, 4, {V(vt[10])}\nv_add_u32 {V(vt[10])}, s{sT1}, {V(vt[10])}")
vPW=vt[10]
e(f"s_mul_i32 s{sT1}, s{sWV}, {TBW}\ns_add_u32 s{sT1}, s{sT1}, {TB}")
e(f"v_mul_u32_u24 {V(vt[12])}, {TBC}, {V(vt[5])}\nv_add_u32 {V(vt[12])}, s{sT1}, {V(vt[12])}\nv_lshl_add_u32 {V(vt[11])}, {V(vt[6])}, 6, {V(vt[12])}")
vTW=vt[11]; vTZ=vt[12]
e(f"v_lshrrev_b32 {V(vt[0])}, 4, {V(vLANE)}\nv_and_b32 {V(vt[1])}, 3, {V(vLANE)}\nv_bfe_u32 {V(vt[2])}, {V(vLANE)}, 2, 2")
e(f"s_movk_i32 s{sT2}, 0x3120\ns_movk_i32 s{sT3}, 0x5320")
e(f"v_lshlrev_b32 {V(vt[3])}, 2, {V(vt[0])}\nv_bfe_u32 {V(vt[3])}, s{sT2}, {V(vt[3])}, 4")
e(f"v_lshlrev_b32 {V(vt[4])}, 2, {V(vt[2])}\nv_bfe_u32 {V(vt[4])}, s{sT3}, {V(vt[4])}, 4")
e(f"v_lshlrev_b32 {V(vt[5])}, 1, {V(vt[3])}\nv_sub_u32 {V(vt[5])}, {V(vt[5])}, {V(vt[2])}")
e(f"v_mov_b32 {V(vt[9])}, 320")
for a in range(2):
    if a: e(f"v_add_u32 {V(vt[5])}, 1, {V(vt[5])}")
    e(f"v_lshlrev_b32 {V(vt[6])}, 6, {V(vt[5])}\nv_lshl_add_u32 {V(vt[6])}, {V(vt[1])}, 4, {V(vt[6])}")
    e(f"v_cmp_gt_u32 vcc, 5, {V(vt[5])}\nv_cndmask_b32 {V(vt[6])}, {V(vt[9])}, {V(vt[6])}, vcc")
    e(f"v_add_u32 {V(vt[7+a])}, s{sT1}, {V(vt[6])}")
vAR=[vt[7],vt[8]]
e(f"s_mul_i32 s{sT1}, s{sWV}, {3*PLG}\ns_add_u32 s{sT1}, s{sT1}, {PL}")
e(f"v_add_u32 {V(vt[5])}, {V(vt[3])}, {V(vt[4])}\nv_mul_u32_u24 {V(vt[5])}, 5, {V(vt[5])}\nv_add_u32 {V(vt[5])}, {V(vt[5])}, {V(vt[1])}\nv_lshl_add_u32 {V(vBR)}, {V(vt[5])}, 4, s{sT1}")
e(f"s_mul_i32 s{sT1}, s{sWV}, {3*HC}\ns_add_u32 s{sT1}, s{sT1}, {HB}")
e(f"v_lshl_add_u32 {V(vt[5])}, {V(vt[4])}, 1, {V(vt[0])}")
e(f"v_lshrrev_b32 {V(vt[6])}, 2, {V(vt[5])}\nv_xor_b32 {V(vt[6])}, {V(vt[6])}, {V(vt[5])}\nv_and_b32 {V(vt[6])}, 1, {V(vt[6])}")
e(f"v_lshl_add_u32 {V(vt[6])}, {V(vt[6])}, 2, {V(vt[1])}\nv_lshl_add_u32 {V(vt[6])}, {V(vt[6])}, 4, s{sT1}")
e(f"v_lshrrev_b32 {V(vt[5])}, 1, {V(vt[5])}\nv_lshl_add_u32 {V(vHW)}, {V(vt[5])}, 9, {V(vt[6])}")
e(f"v_lshlrev_b32 {V(vSTA)}, 4, {V(vLANE)}\nv_add_u32 {V(vSTA)}, {ST}, {V(vSTA)}")
e(f"s_mul_i32 s{sT1}, s{sWV}, {WSTW}")
e(f"v_and_b32 {V(vt[5])}, 1, {V(vt[0])}\nv_lshlrev_b32 {V(vt[5])}, 5, {V(vt[5])}\nv_lshl_add_u32 {V(vt[5])}, {V(vt[1])}, 3, {V(vt[5])}\nv_add_u32 {V(vt[5])}, s{sT1}, {V(vt[5])}")
e(f"v_lshrrev_b32 {V(vt[6])}, 5, {V(vLANE)}")
e(f"v_lshl_add_u32 {V(vt[9])}, {V(vt[6])}, 3, {V(vt[2])}\nv_mul_u32_u24 {V(vt[9])}, 192, {V(vt[9])}\nv_add_u32 {V(vW1R)}, {V(vt[9])}, {V(vt[5])}")
e(f"v_lshl_add_u32 {V(vt[9])}, {V(vt[6])}, 2, {V(vt[2])}\nv_mul_u32_u24 {V(vt[9])}, 192, {V(vt[9])}\nv_add_u32 {V(vW2R)}, {V(vt[9])}, {V(vt[5])}")
e(f"v_lshl_add_u32 {V(vW2D)}, {V(vLANE)}, 4, s{sT1}")
e(f"v_and_b32 {V(vt[9])}, 31, {V(vLANE)}\nv_mul_u32_u24 {V(vt[13])}, {HC}, {V(vt[6])}\nv_lshl_add_u32 {V(vt[13])}, {V(vt[9])}, 4, {V(vt[13])}\nv_add_u32 {V(vH1R)}, {HB}, {V(vt[13])}")
e(f"s_mul_i32 s{sT1}, s{sWV}, {XW}")
e(f"v_lshrrev_b32 {V(vt[13])}, 3, {V(vt[9])}\nv_mul_u32_u24 {V(vt[13])}, 204, {V(vt[13])}\nv_and_b32 {V(vt[14])}, 7, {V(vLANE)}\nv_mul_u32_u24 {V(vt[14])}, 25, {V(vt[14])}\nv_add_u32 {V(vt[13])}, {V(vt[13])}, {V(vt[14])}")
e(f"v_mul_u32_u24 {V(vt[14])}, 12, {V(vt[6])}\nv_add_u32 {V(vt[13])}, {V(vt[13])}, {V(vt[14])}\nv_lshl_add_u32 {V(vXW)}, {V(vt[13])}, 4, s{sT1}")
e(f"s_mul_i32 s{sT1}, s{sWV}, 50")
e(f"v_mul_u32_u24 {V(vt[5])}, 43, {V(vLANE)}\nv_lshrrev_b32 {V(vt[5])}, 9, {V(vt[5])}")
e(f"v_mul_u32_u24 {V(vt[6])}, 12, {V(vt[5])}\nv_sub_u32 {V(vt[6])}, {V(vLANE)}, {V(vt[6])}")
def slotaddr(dst0,dst1,xl,g):
    e(f"v_and_b32 {V(vt[13])}, 3, {V(xl)}\nv_mul_u32_u24 {V(vt[13])}, 204, {V(vt[13])}\nv_lshrrev_b32 {V(vt[14])}, 2, {V(xl)}\nv_mul_u32_u24 {V(vt[14])}, 25, {V(vt[14])}")
    e(f"v_add3_u32 {V(vt[13])}, {V(vt[13])}, {V(vt[14])}, {V(g)}\nv_add_lshl_u32 {V(dst0)}, {V(vt[13])}, s{sT1}, 4\nv_add_u32 {V(dst1)}, {XB}, {V(dst0)}")
slotaddr(vRA0,vRA1,vt[5],vt[6])
e(f"v_add_u32 {V(vt[9])}, 128, {V(vLANE)}\nv_mul_u32_u24 {V(vt[5])}, 171, {V(vt[9])}\nv_lshrrev_b32 {V(vt[5])}, 12, {V(vt[5])}")
e(f"v_mul_u32_u24 {V(vt[6])}, 24, {V(vt[5])}\nv_sub_u32 {V(vt[6])}, {V(vt[9])}, {V(vt[6])}")
e(f"v_and_b32 {V(vt[9])}, 1, {V(vt[6])}\nv_mul_u32_u24 {V(vt[9])}, 12, {V(vt[9])}\nv_lshrrev_b32 {V(vt[6])}, 1, {V(vt[6])}\nv_add_u32 {V(vt[6])}, {V(vt[6])}, {V(vt[9])}")
slotaddr(vRB0,vRB1,vt[5],vt[6])
e(f"s_and_b32 s{sT1}, s{sWV}, 1\ns_lshl_b32 s{sT1}, s{sT1}, 3\ns_add_u32 s{sT1}, s{sT1}, s{sX0}\ns_mul_i32 s{sT1}, s{sT1}, 192")
e(f"v_lshl_add_u32 {V(vGA)}, {V(vLANE)}, 4, s{sT1}\nv_lshl_add_u32 {V(vGB)}, {V(vLANE)}, 3, s{sT1}")
e(f"s_lshr_b32 s{sT1}, s{sWV}, 1\ns_xor_b32 s{sT2}, s{sT1}, 1\ns_add_u32 s{sT1}, s{sT1}, s{sY0}\ns_add_u32 s{sT2}, s{sT2}, s{sY0}\ns_mul_i32 s{sT1}, s{sT1}, {ROW}\ns_mul_i32 s{sT2}, s{sT2}, {ROW}")
for t in range(7):
    e(f"s_add_u32 s{sTR+t}, s{sT2 if (t>>1)&1 else sT1}, {2*t*ROW}")
for z in (WN+3,WN+7,WN+8,WN+12): e(f"v_mov_b32 {V(z)}, 0")
for i in range(4): e(f"v_mov_b32 {V(PT+i)}, 0")
e(f"ds_write_b128 {V(vTZ)}, {V(PT,4)} offset:320")
for rho in range(2):
    for i in range(8):
        e(f"v_lshlrev_b32 {V(DU+i)}, 16, {V(DW+i)}" if rho==0 else f"v_and_b32 {V(DU+i)}, 0xffff0000, {V(DW+i)}")
    if rho==0: stamp("dw")
    for i in range(3): e(f"v_add_f32 {V(DU+1+i)}, {V(DU+1+i)}, {V(DU+5+i)}")
    w=[V(DU+i) for i in range(5)]
    E=[(w[0],w[1]),(w[2],w[3]),(w[4],'0')]; O=[('0',w[0]),(w[1],w[2]),(w[3],w[4])]
    if rho==1: e("s_waitcnt lgkmcnt(0)")
    for k in range(3):
        e(f"v_cvt_pk_bf16_f32 {V(WN+k)}, {E[k][0]}, {E[k][1]}")
        e(f"v_cvt_pk_bf16_f32 {V(WN+4+k)}, {O[k][0]}, {O[k][1]}")
        e(f"v_cvt_pk_bf16_f32 {V(WN+9+k)}, {E[k][0]}, {E[k][1]}")
        e(f"v_cvt_pk_bf16_f32 {V(WN+13+k)}, {O[k][0]}, {O[k][1]}")
    for ox in range(4): e(f"ds_write_b128 {V(vTW)}, {V(WN+4*ox,4)} offset:{16*ox}")
    e("s_waitcnt lgkmcnt(0)")
    for cp in range(12):
        for f in range(2):
            t=afrag(2*cp+rho,f)
            for a in range(2):
                e(f"ds_read_b64 {R((t[0],t[1]+2*a),2)}, {V(vAR[a])} offset:{cp*TBC+8*f}")
stamp("table")
for k in range(5):
    pt=PT+16*(k&1)
    X=lambda i,d: V(XS+16*k+4*i+d)
    for d in range(4):
        for hi in range(2):
            j=2*d+hi
            sel=sPHI if hi else sPLO
            e(f"v_perm_b32 {V(pt+2*j)}, {X(1,d)}, {X(0,d)}, s{sel}")
            e(f"v_perm_b32 {V(pt+2*j+1)}, {X(3,d)}, {X(2,d)}, s{sel}")
    if k==4: e(f"s_mov_b64 exec, s[{sEX}:{sEX+1}]")
    for j in range(8):
        e(f"ds_write_b64 {V(vPW)}, {V(pt+2*j,2)} offset:{j*PLC+160*k}")
    if k==4: e("s_mov_b64 exec, -1")
stamp("planar")
e("s_waitcnt vmcnt(0)")
stamp("w1arr")
def w1f(mt,ks): return 4*(mt*6+ks)
def w2f(ot,mt,u): return 72+4*(ot*6+mt*2+u)
for mt in range(3):
    for ks in range(6):
        for h in range(2):
            e(f"ds_read_b64_tr_b16 {A(w1f(mt,ks)+2*h,2)}, {V(vW1R)} offset:{(16*ks+4*h)*192+64*mt}")
e("s_waitcnt lgkmcnt(0)")
e(f"s_mul_i32 s{sT2}, s{sWV}, {WSTW}\ns_mov_b32 s{sT1}, 0")
for g in range(5):
    e(f"s_mov_b32 m0, s{sT2}")
    for i in range(4 if g<4 else 2):
        e(f"buffer_load_dwordx4 {V(vW2D)}, {srd(sW2)}, s{sT1} offen offset:{1024*i} lds")
    if g<4: e(f"s_add_u32 s{sT1}, s{sT1}, 4096\ns_add_u32 s{sT2}, s{sT2}, 4096")
e("s_barrier")
stamp("bar1")
def bread(k):
    cl,f=k>>1,k&1
    return f"ds_read_b128 {V(BRING+4*(k%8),4)}, {V(vBR)} offset:{(cl>>3)*PLG+(cl&7)*PLC+16*f}"
for k in range(7): e(bread(k))
for k in range(48):
    cl,f=k>>1,k&1
    d=V(ACC+4*cl,4)
    e(f"s_waitcnt lgkmcnt({min(6,47-k)})")
    e(f"v_mfma_f32_16x16x32_bf16 {d}, {R(afrag(cl,f),4)}, {V(BRING+4*(k%8),4)}, {d if f else '0'}")
    if k+7<48: e(bread(k+7))
    c2=cl-3
    if c2>=1:
        for j in (2*f,2*f+1):
            e(f"v_add_f32 {V(S1+j)}, {V(ACC+j) if c2==1 else V(S1+j)}, {V(ACC+4*c2+j)}")
for cl in range(24):
    for h in range(2):
        a=V(ACC+4*cl+2*h,2)
        if cl==0: e(f"v_pk_mul_f32 {V(S2+2*h,2)}, {a}, {a}")
        else: e(f"v_pk_fma_f32 {V(S2+2*h,2)}, {a}, {a}, {V(S2+2*h,2)}")
for cl in range(21,24):
    for h in range(2): e(f"v_pk_add_f32 {V(S1+2*h,2)}, {V(S1+2*h,2)}, {V(ACC+4*cl+2*h,2)}")
e(f"s_lshl_b32 s{sT1}, s{sWV}, 11\nv_add_u32 {V(vt[0])}, s{sT1}, {V(vSTA)}")
e(f"ds_write_b128 {V(vt[0])}, {V(S1,4)}\nds_write_b128 {V(vt[0])}, {V(S2,4)} offset:1024")
e("s_waitcnt lgkmcnt(0)")
stamp("conv")
e("s_barrier")
SR=BRING
for w in range(4):
    for h in range(2): e(f"ds_read_b128 {V(SR+8*w+4*h,4)}, {V(vSTA)} offset:{2048*w+1024*h}")
e("s_waitcnt vmcnt(0)")
for ot in range(3):
    for mt in range(3):
        for u in range(2):
            for h in range(2):
                e(f"ds_read_b64_tr_b16 {A(w2f(ot,mt,u)+2*h,2)}, {V(vW2R)} offset:{(32*mt+16*u+8*h)*192+64*ot}")
for k in range(4):
    e(f"v_pk_add_f32 {V(SR+2*k,2)}, {V(SR+2*k,2)}, {V(SR+8+2*k,2)}")
    e(f"v_pk_add_f32 {V(SR+16+2*k,2)}, {V(SR+16+2*k,2)}, {V(SR+24+2*k,2)}")
for k in range(4):
    e(f"v_pk_add_f32 {V(SR+2*k,2)}, {V(SR+2*k,2)}, {V(SR+16+2*k,2)}")
inv=f"{f2u(1/96):#x}"
for j in range(4):
    e(f"v_mul_f32 {V(SR+j)}, {inv}, {V(SR+j)}")
    e(f"v_mul_f32 {V(SR+4+j)}, {inv}, {V(SR+4+j)}")
for j in range(4): e(f"v_fma_f32 {V(SR+4+j)}, -{V(SR+j)}, {V(SR+j)}, {V(SR+4+j)}")
for j in range(4): e(f"v_max_f32 {V(SR+4+j)}, 0, {V(SR+4+j)}")
for j in range(4): e(f"v_add_f32 {V(SR+4+j)}, {f2u(1e-5):#x}, {V(SR+4+j)}")
for j in range(4): e(f"v_rsq_f32 {V(SR+4+j)}, {V(SR+4+j)}")
for j in range(4): e(f"v_mul_f32 {V(SR+4+j)}, s{sSC}, {V(SR+4+j)}")
for j in range(4): e(f"v_mul_f32 {V(SR+j)}, -{V(SR+j)}, {V(SR+4+j)}")
e(";@align8")
for u in range(3):
    for cl in range(8*u,8*u+8):
        for h in range(2):
            a=V(ACC+4*cl+2*h,2)
            e(f"v_pk_fma_f32 {a}, {a}, {V(SR+4+2*h,2)}, {V(SR+2*h,2)}")
    for j in range(4):
        for d in range(4):
            e(f"v_cvt_pk_bf16_f32 {V(HP+16*u+4*j+d)}, {V(ACC+4*(8*u+2*d)+j)}, {V(ACC+4*(8*u+2*d+1)+j)}")
        e(f"ds_write_b128 {V(vHW)}, {V(HP+16*u+4*j,4)} offset:{u*HC+128*j}")
e("s_waitcnt lgkmcnt(0)")
stamp("ln")
e("s_barrier")
if DBG=='h':
    e(f"s_mul_i32 s{sT1}, s2, 43008\nv_lshlrev_b32 {V(vt[0])}, 4, v0\nv_add_u32 {V(vt[1])}, {HB}, {V(vt[0])}\nv_add_u32 {V(vt[0])}, s{sT1}, {V(vt[0])}")
    for k in range(11):
        if k==10: e(f"v_cmp_gt_u32 vcc, 128, v0\ns_and_saveexec_b64 s[{sEX}:{sEX+1}], vcc")
        e(f"ds_read_b128 {V(16,4)}, {V(vt[1])} offset:{4096*k}\ns_waitcnt lgkmcnt(0)")
        e(f"global_store_dwordx4 {V(vt[0])}, {V(16,4)}, s[{sWS}:{sWS+1}]\nv_add_u32 {V(vt[0])}, 4096, {V(vt[0])}\ns_waitcnt vmcnt(0)")
    e("s_endpgm")
H=lambda c: 16+16*(c%3)
T=lambda c: 64+16*(c%3)
G=112
B1=128
RR=152
XR=200; XU=206; OUT=220
O=lambda t,ot: 144+48*(t&1)+16*ot
NC=21
def G1(c):
    t,mt=divmod(c,3); d=V(H(c),16)
    return [f"v_mfma_f32_32x32x16_bf16 {d}, {A(w1f(mt,ks),4)}, {V(B1+4*ks,4)}, {d if ks else '0'}" for ks in range(6)]
def G2(c):
    t,mt=divmod(c,3); L=[]
    for u in range(2):
        for ot in range(3):
            d=A(O(t,ot),16)
            L.append(f"v_mfma_f32_32x32x16_bf16 {d}, {A(w2f(ot,mt,u),4)}, {V(G+4*u,4)}, {d if (mt or u) else '0'}")
    return L
def tz(c):
    L=[f"v_pk_fma_f32 {V(T(c)+i,2)}, {V(H(c)+i,2)}, {V(H(c)+i,2)}, s[{sAP}:{sAP+1}]" for i in range(0,16,2)]
    L+=[f"v_pk_mul_f32 {V(T(c)+i,2)}, {V(H(c)+i,2)}, {V(T(c)+i,2)} neg_lo:[1,0] neg_hi:[1,0]" for i in range(0,16,2)]
    return L
def ex(c): return [f"v_exp_f32 {V(T(c)+i)}, {V(T(c)+i)}" for i in range(16)]
def dd(c): return [f"v_pk_fma_f32 {V(T(c)+i,2)}, {V(T(c)+i,2)}, s[{sSC}:{sSC+1}], s[{sSC}:{sSC+1}]" for i in range(0,16,2)]
def rc(c): return [f"v_rcp_f32 {V(T(c)+i)}, {V(T(c)+i)}" for i in range(16)]
def gg(c): return [f"v_pk_mul_f32 {V(T(c)+i,2)}, {V(H(c)+i,2)}, {V(T(c)+i,2)}" for i in range(0,16,2)]
def cv(c): return [f"v_cvt_pk_bf16_f32 {V(G+i)}, {V(T(c)+2*i)}, {V(T(c)+2*i+1)}" for i in range(8)]
def b1r(t): return [f"ds_read_b128 {V(B1+4*ks,4)}, {V(vH1R)} offset:{ks*2*HC+512*t}" for ks in range(6)]
def xw(t): return [f"ds_write_b128 {V(vXW)}, {A(O(t,ot)+4*i,4)} offset:{(4*ot+i)*16+XB*(t&1)}" for ot in range(3) for i in range(4)]
def xr(t):
    L=[]
    for pc in range(3):
        for src in range(4):
            ad=[vRA0,vRA1][t&1] if pc<2 else [vRB0,vRB1][t&1]
            L.append(f"ds_read_b128 {V(RR+16*pc+4*src,4)}, {V(ad)} offset:{src*XW+(192 if pc==1 else 0)}")
    return L
def xld(t): return [f"buffer_load_dwordx4 {V(XR,4)}, {V(vGA)}, {srd(sXS)}, s{sTR+t} offen", f"buffer_load_dwordx2 {V(XR+4,2)}, {V(vGB)}, {srd(sXS)}, s{sTR+t} offen offset:1024"]
def unp(t):
    L=[]
    for d in range(6):
        L.append(f"v_lshlrev_b32 {V(XU+2*d)}, 16, {V(XR+d)}")
        L.append(f"v_and_b32 {V(XU+2*d+1)}, s{sT0}, {V(XR+d)}")
    return L
def adds(t):
    L=[]
    for st in range(4):
        for pc in range(3):
            for h in range(2):
                r=lambda src: V(RR+16*pc+4*src+2*h,2)
                if st==0: L.append(f"v_pk_add_f32 {r(0)}, {r(0)}, {r(1)}")
                if st==1: L.append(f"v_pk_add_f32 {r(2)}, {r(2)}, {r(3)}")
                if st==2: L.append(f"v_pk_add_f32 {r(0)}, {r(0)}, {V(XU+4*pc+2*h,2)}")
                if st==3: L.append(f"v_pk_add_f32 {r(0)}, {r(0)}, {r(2)}")
    return L
def cvo(t): return [f"v_cvt_pk_bf16_f32 {V(OUT+2*pc+h)}, {V(RR+16*pc+2*h)}, {V(RR+16*pc+2*h+1)}" for pc in range(3) for h in range(2)]
def sto(t): return [f"buffer_store_dwordx4 {V(OUT,4)}, {V(vGA)}, {srd(sOS)}, s{sTR+t} offen {STORE_MOD}", f"buffer_store_dwordx2 {V(OUT+4,2)}, {V(vGB)}, {srd(sOS)}, s{sTR+t} offen offset:1024 {STORE_MOD}"]
e(f"s_mov_b32 s{sT0}, 0xffff0000")
for x in b1r(0): e(x)
ok=lambda c: 0<=c<NC
okt=lambda t: 0<=t<7
def cost(x): return 8 if x.startswith(('v_exp','v_rcp')) else 4
DROP=os.environ.get('DROP','').split(',')
_e=e
def e(x):
    if any(d and x.startswith(d) for d in DROP): return
    _e(x)
for c in range(-1,28):
    P=[]
    if ok(c): P+=tz(c)
    if ok(c-1): P+=dd(c-1)
    if ok(c-2): P+=gg(c-2)
    if c%3==0 and okt(c//3-3): P+=adds(c//3-3)
    if P: e(";@align8")
    for x in P: e(x)
    M=[]; F=[]; S=[[] for _ in range(12)]
    if ok(c+1): M+=G1(c+1)
    if ok(c-2): F+=cv(c-2)
    if c%3==0 and okt(c//3-3): F+=cvo(c//3-3)
    g2=G2(c-2) if ok(c-2) else []
    if ok(c): F+=ex(c)
    if ok(c-1): F+=rc(c-1)
    if c%3==2 and okt((c-8)//3): F+=unp((c-8)//3)
    if c%3==1:
        t=(c-1)//3
        if okt(t+1):
            for k,x in enumerate(b1r(t+1)): S[6+k].append(x)
        t=(c-7)//3
        if okt(t):
            S[0]+=["s_waitcnt lgkmcnt(0)","s_barrier"]
            for k,x in enumerate(xr(t)[:6]): S[k].append(x)
    if c%3==2:
        t=(c-5)//3
        if okt(t):
            for k,x in enumerate(xw(t)[:6]): S[2*k].append(x)
        if okt(t-1):
            for k,x in enumerate(xr(t-1)[6:]): S[2*k+1].append(x)
    if c%3==0:
        t=(c-6)//3
        if okt(t):
            for k,x in enumerate(xw(t)[6:]): S[2*k].append(x)
            for k,x in enumerate(xld(t)): S[9+2*k].append(x)
        if okt(t-1):
            for k,x in enumerate(sto(t-1)): S[5+2*k].append(x)
    if not M and g2:
        n=8+(6 if (c%3==0 and okt(c//3-3)) else 0)
        for x in F[:n]: e(x)
        F=F[n:]
    M+=g2
    nm=len(M)
    if nm==0:
        for x in F: e(x)
        for sl in S:
            for x in sl: e(x)
        continue
    per=12//nm
    fi=0
    for k,m in enumerate(M):
        e(m)
        for sl in S[k*per:(k+1)*per]:
            for x in sl: e(x)
        b=0
        while fi<len(F) and (b+cost(F[fi])<=24 or k==nm-1):
            b+=cost(F[fi]); e(F[fi]); fi+=1
    if c in (1,7,13,19,22): stamp(f"M{c}")
e=_e
e("s_waitcnt vmcnt(0)")
stamp("end")
if STAMPS:
    e(f"v_mov_b32 {V(16)}, 0")
    for k in range(stampn[0]):
        e(f"s_sub_u32 s{sT1}, s{70+2*k}, s70\nv_writelane_b32 {V(16)}, s{sT1}, {k}")
    e(f"v_writelane_b32 {V(16)}, s70, 63")
    e(f"s_lshl_b32 s{sT1}, s2, 10\nv_lshl_add_u32 {V(17)}, v0, 2, s{sT1}\nglobal_store_dword {V(17)}, {V(16)}, s[{sWS}:{sWS+1}]\ns_waitcnt vmcnt(0)")
if PROBE:
    e("s_sub_u32 s98, s98, s96\ns_lshl_b32 s98, s98, 2\ns_memrealtime s[90:91]\ns_waitcnt lgkmcnt(0)\nL_dl:\ns_memrealtime s[92:93]\ns_waitcnt lgkmcnt(0)\ns_sub_u32 s3, s92, s90\ns_cmp_lt_u32 s3, s98\ns_cbranch_scc1 L_dl")
e("L_end:\ns_endpgm")
p.finalize()
p.align_fix()
hdr=open('cdna_kernels/'+NAME+'.s.ref').read().split('\n')
head=[l for l in hdr if l.startswith(';') and '@launch' not in l]
txt='\n'.join(head)+f"\n; @launch grid=(224,1,1) block=(256,1,1) lds={LDS_TOTAL}\n"
txt+=f""".amdgcn_target "amdgcn-amd-amdhsa--gfx950"
.text
.globl {NAME}_kernel
.p2align 8
.type {NAME}_kernel,@function
{NAME}_kernel:
"""+p.text()+f"""; pad so that the code prefetch stays inside the text section
.fill 8192, 4, 0xbf810000
.section .rodata,"a"
.p2align 6
.amdhsa_kernel {NAME}_kernel
  .amdhsa_next_free_vgpr 512
  .amdhsa_next_free_sgpr 102
  .amdhsa_accum_offset 256
  .amdhsa_group_segment_fixed_size 0
  .amdhsa_kernarg_size 64
  .amdhsa_user_sgpr_count 2
  .amdhsa_user_sgpr_kernarg_segment_ptr 1
  .amdhsa_system_sgpr_workgroup_id_x 1
  .amdhsa_float_denorm_mode_32 3
.end_amdhsa_kernel
"""
out=sys.argv[1] if len(sys.argv)>1 else 'cdna_kernels/'+NAME+'.s'
open(out,'w').write(txt)
if STAMPS: open(out+'.stamps','w').write(' '.join(stampnames))
assert all((T_*4682)>>16==T_//14 for T_ in range(224))
assert all((l*43)>>9==l//12 for l in range(64))
assert all((l*52)>>8==l//5 for l in range(60))
assert all((u*171)>>11==u//12 for u in range(192))
assert all((u*171)>>12==u//24 for u in range(128,192))
```

```python
import re
TRANS={'v_exp_f32','v_rcp_f32','v_rsq_f32','v_log_f32','v_sqrt_f32','v_sin_f32','v_cos_f32'}
def regs_of(tok):
    tok=tok.strip()
    tok=tok.lstrip('-')
    m=re.match(r'^abs\((.*)\)$',tok)
    if m: tok=m.group(1)
    m=re.match(r'^([vas])(\d+)$',tok)
    if m: return [(m.group(1),int(m.group(2)))]
    m=re.match(r'^([vas])\[(\d+):(\d+)\]$',tok)
    if m: return [(m.group(1),i) for i in range(int(m.group(2)),int(m.group(3))+1)]
    if tok=='vcc': return [('x','vcc')]
    if tok=='exec': return [('x','exec')]
    if tok=='m0': return [('x','m0')]
    return []
def is_literal(tok):
    tok=tok.strip()
    if regs_of(tok) or tok in('off','vcc','exec','m0','scc'): return False
    try:
        if tok in('0.5','-0.5','1.0','-1.0','2.0','-2.0','4.0','-4.0'): return False
        v=int(tok,0)
        if v in (0x3f000000,0xbf000000,0x3f800000,0xbf800000,0x40000000,0xc0000000,0x40800000,0xc0800000,0x3e22f983): return False
        return not(-16<=v<=64)
    except ValueError:
        try:
            float(tok); return True
        except ValueError:
            return False
VOP3ONLY=('v_fma_f32','v_perm_b32','v_cvt_pk_bf16_f32','v_mad_','v_mul_lo_u32','v_mul_hi_u32','v_lshl_add_u32','v_add3_u32','v_add_lshl_u32','v_lshl_or_b32','v_and_or_b32','v_bfe_u32','v_pk_','v_mfma','v_readlane','v_writelane','v_med3','v_max3','v_min3','v_accvgpr','v_bitop3','v_or3','v_dot2_f32','v_mbcnt')
class I:
    def __init__(s,text):
        s.text=text.strip()
        t=s.text.split(';')[0].strip()
        s.label=t.endswith(':')
        s.directive=t.startswith('.')
        s.reads=set(); s.writes=set(); s.kind='other'; s.size=0; s.srcc=set(); s.ab=set()
        s.async_dst=set()
        if s.label or s.directive or not t:
            s.kind='none'; return
        p=t.split(None,1); s.op=p[0]; rest=p[1] if len(p)>1 else ''
        op=s.op
        base=re.sub(r'_e(32|64)$','',op); s.base=base
        ops=[]; depth=0; cur=''
        for ch in rest:
            if ch in '[(' : depth+=1
            if ch in '])' : depth-=1
            if ch==',' and depth==0: ops.append(cur.strip()); cur=''
            else: cur+=ch
        if cur.strip(): ops.append(cur.strip())
        mods=''
        if ops:
            last=ops[-1].split(None,1)
            ops[-1]=last[0]; mods=last[1] if len(last)>1 else ''
        s.ops=ops; s.mods=mods
        R=lambda k: set(regs_of(ops[k])) if k<len(ops) else set()
        allr=lambda a: set().union(*[R(k) for k in range(a,len(ops))]) if len(ops)>a else set()
        if base.startswith('v_mfma'):
            s.kind='mfma'; s.passes=8 if '32x32x16' in base else 4
            s.writes=R(0); s.ab=R(1)|R(2); s.srcc=R(3); s.reads=s.ab|s.srcc; s.size=8
        elif base.startswith('v_'):
            s.kind='trans' if base in TRANS else ('pk' if base.startswith('v_pk_') else 'valu')
            s.writes=R(0); s.reads=allr(1)
            if base.startswith('v_fmac') or base.startswith('v_writelane') or base.startswith('v_dot2c'): s.reads|=R(0)
            if base.startswith('v_permlane'): s.reads|=R(0); s.writes|=R(1)
            if base.startswith(('v_add_co','v_sub_co','v_addc_co')): s.writes|=R(1); s.reads=allr(2)
            big = op.endswith('_e64') or base.startswith(VOP3ONLY) or any(o.startswith('-') and regs_of(o) for o in ops) or 'abs(' in rest or mods!=''
            if base.startswith('v_cmp') and ops[0]!='vcc': big=True
            if base.startswith('v_cndmask') and ops[-1]!='vcc': big=True
            if not big and len(ops)>=3 and not base.startswith('v_cmp'):
                k=2
                if base.startswith(('v_add_co','v_sub_co','v_addc_co')): k=3
                if not ops[k].startswith('v'): big=True
            if not big and base.startswith('v_cmp') and not ops[2].startswith('v'): big=True
            s.size=8 if (big or any(is_literal(o) for o in ops[1:])) else 4
        elif base.startswith('ds_read') or base.startswith('ds_bpermute') or base.startswith('ds_swizzle'):
            s.kind='ds'; s.async_dst=R(0); s.writes=R(0); s.reads=allr(1); s.size=8
        elif base.startswith('ds_write') or base.startswith('ds_add'):
            s.kind='ds'; s.reads=allr(0); s.size=8
        elif base.startswith('buffer_load'):
            s.kind='vmem'; s.size=8
            if re.search(r'\blds\b',mods):
                s.reads=allr(0)|{('x','m0')}; s.dma=True
            else:
                s.async_dst=R(0); s.writes=R(0); s.reads=allr(1)
        elif base.startswith('buffer_store'):
            s.kind='vmem'; s.size=8; s.reads=allr(0); s.store_data=R(0) if ('x4' in base or 'x3' in base) else set()
        elif base.startswith('global_load'):
            s.kind='vmem'; s.size=8; s.async_dst=R(0); s.writes=R(0); s.reads=allr(1)
        elif base.startswith('global_store'):
            s.kind='vmem'; s.size=8; s.reads=allr(0); s.store_data=R(1) if ('x4' in base or 'x3' in base) else set()
        elif base.startswith('s_load') or base.startswith('s_memtime') or base.startswith('s_memrealtime'):
            s.kind='smem'; s.size=8; s.async_dst=R(0); s.writes=R(0); s.reads=allr(1)
        elif base in('s_waitcnt','s_nop','s_barrier','s_endpgm','s_setprio','s_sleep') or base.startswith(('s_branch','s_cbranch')):
            s.kind='sopp'; s.size=4
        elif base.startswith('s_cmp'):
            s.kind='salu'; s.reads=allr(0); s.size=8 if any(is_literal(o) for o in ops) else 4
        elif base.startswith('s_'):
            s.kind='salu'; s.writes=R(0); s.reads=allr(1)
            s.size=8 if (any(is_literal(o) for o in ops[1:]) and not base.startswith(('s_movk','s_addk','s_mulk'))) else 4
        else:
            raise Exception("unknown instr "+t)
    def ws(s):
        if s.kind=='none': return 0
        if s.base=='s_nop': return int(s.ops[0],0)+1
        return 1
    def isvalu(s): return s.kind in('valu','trans','pk')

def need_ws(p,c):
    n=0
    vreg=lambda S:{r for r in S if r[0] in 'va'}
    sreg=lambda S:{r for r in S if r[0] in 'sx'}
    if p.isvalu():
        if c.kind=='mfma' and vreg(p.writes)&c.reads: n=max(n,2)
        if p.kind=='trans' and c.kind in('valu','pk','mfma') and p.writes&c.reads: n=max(n,1)
        if p.kind=='trans' and c.kind in('ds','vmem') and p.writes&c.reads: n=max(n,1)
        sw=sreg(p.writes)
        if sw:
            if c.kind=='vmem' and sw&c.reads: n=max(n,5)
            if c.isvalu() and sw&c.reads: n=max(n,4 if c.base.startswith(('v_readlane','v_writelane')) else 2)
            if c.kind in('salu','smem') and sw&c.reads: n=max(n,3)
        if c.isvalu() and c.base.startswith(('v_readfirstlane','v_readlane')) and vreg(p.writes)&c.reads: n=max(n,1)
        if c.isvalu() and (c.base.startswith('v_permlane') or 'dpp' in c.text or 'row_' in c.mods or 'quad_perm' in c.mods) and vreg(p.writes)&c.reads: n=max(n,2)
    if p.kind=='mfma':
        D=p.writes
        big=p.passes==8
        if c.kind=='mfma':
            if D&c.ab: n=max(n,12 if big else 8)
            if D&c.srcc:
                if not(c.srcc==D and c.passes==p.passes): n=max(n,10 if big else 6)
            elif D&c.writes:
                n=max(n,10 if big else 6)
        elif c.isvalu() or c.kind in('ds','vmem'):
            if D&(c.reads|c.writes): n=max(n,12 if big else 8)
        if c.isvalu() and p.srcc&c.writes: n=max(n,7 if big else 3)
    if p.kind=='salu' and ('x','m0') in p.writes and getattr(c,'dma',False): n=max(n,1)
    if p.kind=='salu' and ('x','exec') in p.writes and c.kind=='mfma': n=max(n,4)
    if p.kind=='vmem' and getattr(p,'store_data',None):
        if c.kind!='none' and p.store_data&c.writes: n=max(n,2)
    return n

class Prog:
    def __init__(s): s.L=[]
    def e(s,text):
        for line in text.split('\n'):
            if line.strip(): s.L.append(I(line))
    def finalize(s,verbose=True):
        out=[]; vm=[]; lg=[]; nn=0; nw=0
        def emit(i): out.append(i)
        for ins in s.L:
            if ins.kind=='none': emit(ins); continue
            if ins.base=='s_waitcnt':
                m=re.search(r'vmcnt\((\d+)\)',ins.text)
                if m:
                    n=int(m.group(1)); vm=vm[len(vm)-n:] if n<len(vm) and n>0 else ([] if n==0 else vm)
                m=re.search(r'lgkmcnt\((\d+)\)',ins.text)
                if m:
                    n=int(m.group(1))
                    if n>0 and any(k=='smem' for k,_ in lg): pass
                    else: lg=lg[len(lg)-n:] if n<len(lg) and n>0 else ([] if n==0 else lg)
                emit(ins); continue
            touch=ins.reads|ins.writes
            w=''
            idx=max([k for k,(kk,d) in enumerate(vm) if d&touch],default=-1)
            if idx>=0:
                n=len(vm)-1-idx; w+=f' vmcnt({n})'; vm=vm[idx+1:]
            idx=max([k for k,(kk,d) in enumerate(lg) if d&touch],default=-1)
            if idx>=0:
                if any(kk=='smem' for kk,_ in lg): n=0; lg=[]
                else: n=min(15,len(lg)-1-idx); lg=lg[len(lg)-n:] if n>0 else []
                w+=f' lgkmcnt({n})'
            if w:
                emit(I('s_waitcnt'+w+' ; auto')); nw+=1
            need=0; dist=0
            for p in reversed(out):
                if p.kind=='none': continue
                r=need_ws(p,ins)
                if r-dist>need: need=r-dist
                dist+=p.ws()
                if dist>=20: break
            if need>0:
                emit(I(f's_nop {need-1} ; auto')); nn+=1
            emit(ins)
            if ins.kind=='vmem':
                vm.append(('vm',ins.async_dst))
                assert len(vm)<=63, "vmcnt overflow"
            if ins.kind=='ds': lg.append(('ds',ins.async_dst))
            if ins.kind=='smem': lg.append(('smem',ins.async_dst))
        s.L=out
        if verbose: print(f"auto waits {nw}, auto nops {nn}, bytes {sum(i.size for i in out)}")
    def align_fix(s):
        L=[i for i in s.L if not (i.kind=='none' and '@align8' in i.text)]
        off=0; out=[]; nw=0; nn=0
        for idx,ins in enumerate(L):
            if ins.size==8 and off%8:
                done=False
                k=len(out)-1
                while k>=0 and (out[k].size==4 or (out[k].kind=='none' and not out[k].label)):
                    p=out[k]
                    if p.kind in('trans','valu') and not p.base.startswith(('v_readfirstlane',)):
                        out[k]=I(p.text.replace(p.op,p.base+'_e64',1)); assert out[k].size==8; done=True; nw+=1; break
                    k-=1
                if not done:
                    run=0
                    for j in L[idx:]:
                        if j.size==8: run+=1
                        elif j.size==4: break
                    if run>=5:
                        out.append(I('s_nop 0 ; align')); done=True; nn+=1
                if done: off+=4
            out.append(ins); off+=ins.size
        s.L=out
        print(f"align: widened {nw}, nops {nn}, bytes {off}")
    def text(s):
        return '\n'.join((i.text if (i.label or i.directive) else '    '+i.text) for i in s.L)+'\n'
```

```python
import math, struct, sys, os
from asmlib import *
NAME="standalone__modern_conv_block_replknet__vision"
def f2u(x): return struct.unpack('<I', struct.pack('<f', x))[0]
KK=2*math.sqrt(2/math.pi)*math.log2(math.e)
SC=(KK*0.044715)**(1/3)
AP=KK/SC
DBG=os.environ.get('DBG','')
STAMPS=os.environ.get('STAMPS','')=='1'
PROBE=os.environ.get('PROBE','')
STORE_MOD=os.environ.get('STORE_MOD','nt')
W1S=0; WSL=18432
XBASE=0; XBUF=24576; XWV=6144; OFFG=XBUF+3072; OFFO=XBUF
RESO=[0,2*XBUF,2*XBUF+3072]
CB=73728; TBW=4048; TBC=336
RAW=98304; RSB=3472
W2B=RAW
HB=RAW+24576; HC=3152
LDS_TOTAL=163840
assert HB+12*HC<=LDS_TOTAL and RAW+18*RSB<=LDS_TOTAL
ROW=43008
XBYTES=224*224*96*2
INV=0x40000000
sXS,sDL,sDS,sW1,sW2,sOS=24,28,32,36,40,44
sWV,sY0,sX0=48,49,50
sAP,sSC,sI96=52,54,56
sPLO,sPHI,sMSK,sEPS=58,59,60,61
sM,sRO,sR0,sR1=62,63,64,65
sA,sB=66,67
sT0,sT1,sT2,sT3=8,9,10,11
sWM,sWO,sW6=12,13,14
sWS=20
stampnames=[]
p=Prog()
cur=[p.L]
def e(text):
    for line in text.split('\n'):
        if line.strip(): cur[0].append(I(line))
class Cap:
    def __enter__(s): s.old=cur[0]; s.L=[]; cur[0]=s.L; return s.L
    def __exit__(s,*a): cur[0]=s.old
def srd(s): return f"s[{s}:{s+3}]"
def V(a,n=1): return f"v{a}" if n==1 else f"v[{a}:{a+n-1}]"
def A(a,n=1): return f"a{a}" if n==1 else f"a[{a}:{a+n-1}]"
def R(t,n): return (A if t[0]=='a' else V)(t[1],n)
def stamp(name):
    e(f';@phase {name}')
    if PROBE and name in ('start',PROBE):
        k=96 if name=='start' else 98
        e(f"s_memrealtime s[{k}:{k+1}]\ns_waitcnt lgkmcnt(0)")
    if STAMPS:
        k=len(stampnames); stampnames.append(name); assert k<16
        e(f"s_memtime s[{70+2*k}:{71+2*k}]\ns_waitcnt lgkmcnt(0)")
def icost(i):
    if i.kind=='none': return 0
    if i.kind=='trans': return 8
    if i.kind=='mfma': return 8
    if i.kind in('ds','vmem'): return 4*len([r for r in i.reads if r[0] in 'va'])
    if i.base=='s_barrier': return 20
    return 4
def merge(main,groups,period,start=0):
    t=start; g=list(groups)
    for i in main:
        if g and t>=period and not (i.reads&{('x','vcc')}) and i.kind!='salu':
            for x in g.pop(0): cur[0].append(x)
            t=0
        cur[0].append(i); t+=icost(i)
    return g
vH1R,vXW,vXR=1,2,3; vPOs=[0,4,11]
vW2B=[5,6,7]; vME,vMO,vMG=8,9,10
vLANE=250; vZA=251
vW1=[144,145]; vW2A=[146,147,148]; vGW,vGR,vBP=149,150,151; vSTW=152; vWD=154; vW1D=[155,156,157]; vHW=158; vST=159
vBR=244; vAR=[245,246]; vTW=247; vEPS=248; vZ4=252
t=[112+i for i in range(32)]
ACC=16; RAWR=160; BT=224; S1=236; S2=240; HP=160; SR=112
DW=16; DU=24; WN=32
O=16; H=lambda c:64+16*(c%3); T=lambda c:112+16*(c%3); B1=192; KR=216; RR=240; G=[252,12]
def w1f(r,ks): return ('a',24*r+4*ks)
def w2f(r,u,ot):
    k=6*r+3*u+ot
    return ('a',144+4*k) if k<28 else ('v',160+4*(k-28))

e("s_cmp_ge_u32 s2, 256\ns_cbranch_scc1 L_end")
stamp("start")
for k,s in enumerate([sXS,sDL,sDS,sW1,sW2,sOS]):
    e(f"s_load_dwordx2 s[{s}:{s+1}], s[0:1], {8*k}")
if DBG or STAMPS: e(f"s_load_dwordx2 s[{sWS}:{sWS+1}], s[0:1], 56")
e(f"v_lshrrev_b32 {V(t[0])}, 6, v0\nv_and_b32 {V(vLANE)}, 63, v0")
e(f"s_getpc_b64 s[6:7]\ns_lshr_b32 s{sT1}, s2, 3\ns_lshl_b32 s{sT0}, s{sT1}, 10")
e(f"v_readfirstlane_b32 s{sWV}, {V(t[0])}")
e(f"v_lshrrev_b32 {V(t[1])}, 5, v0\nv_lshl_add_u32 {V(t[1])}, {V(t[1])}, 7, s{sT0}")
e(f"global_load_dword {V(t[31])}, {V(t[1])}, s[6:7]")
e(f"s_and_b32 s{sT0}, s2, 7\ns_lshl_b32 s{sT0}, s{sT0}, 5\ns_add_u32 s{sT0}, s{sT0}, s{sT1}\ns_lshr_b32 s{sT1}, s{sT0}, 4\ns_and_b32 s{sT0}, s{sT0}, 15")
e(f"s_mul_i32 s{sY0}, s{sT1}, {14*ROW}\ns_mul_i32 s{sX0}, s{sT0}, {14*192}")
e(f"v_min_u32 {V(t[2])}, 59, {V(vLANE)}")
e(f"v_mul_u32_u24 {V(t[3])}, 43, {V(t[2])}\nv_lshrrev_b32 {V(t[3])}, 9, {V(t[3])}")
e(f"v_mul_u32_u24 {V(t[4])}, 12, {V(t[3])}\nv_sub_u32 {V(t[4])}, {V(t[2])}, {V(t[4])}")
e(f"s_mul_i32 s{sT2}, s{sWV}, 48")
e(f"v_lshl_add_u32 {V(t[5])}, {V(t[4])}, 2, s{sT2}")
e(f"v_mul_u32_u24 {V(t[6])}, 960, {V(t[3])}\nv_add_u32 {V(t[6])}, {V(t[6])}, {V(t[5])}")
e(f"v_mul_u32_u24 {V(t[7])}, 576, {V(t[3])}\nv_add_u32 {V(t[7])}, {V(t[7])}, {V(t[5])}\nv_subrev_u32 {V(t[7])}, 576, {V(t[7])}")
for s,n in [(sDS,25*192),(sDL,9*192),(sXS,XBYTES),(sW1,96*384*2),(sW2,96*384*2),(sOS,XBYTES)]:
    e(f"s_mov_b32 s{s+2}, {n}\ns_mov_b32 s{s+3}, 0x20000")
e(f"s_mul_i32 s{sT2}, s{sWV}, 52\ns_min_u32 s{sT2}, s{sT2}, 152")
e(f"v_add_u32 {V(t[8])}, s{sT2}, {V(vLANE)}")
e(f"s_lshl_b32 s{sM}, s{sT2}, 4\ns_add_u32 s{sM}, s{sM}, {RAW}")
e(f"s_sub_u32 s{sT3}, s{sX0}, 384\nv_lshl_add_u32 {V(t[9])}, {V(t[8])}, 4, s{sT3}")
e(f"s_cmp_eq_u32 s{sT0}, 0\ns_cselect_b32 s{sT2}, 24, 0\ns_cmp_eq_u32 s{sT0}, 15\ns_cselect_b32 s{sT3}, 24, s{sT2}\ns_sub_u32 s{sT3}, 216, s{sT3}")
e(f"v_subrev_u32 {V(t[8])}, s{sT2}, {V(t[8])}\nv_mov_b32 {V(t[10])}, {INV}")
e(f"v_cmp_gt_u32 vcc, s{sT3}, {V(t[8])}")
e(f"s_sub_u32 s{sR0}, s{sY0}, {2*ROW}\ns_sub_u32 s{sR1}, s{sY0}, {ROW}")
e(f"v_cndmask_b32 {V(t[9])}, {V(t[10])}, {V(t[9])}, vcc")
e(f"s_cmp_eq_u32 s{sT1}, 0\ns_cselect_b32 s{sR0}, {INV}, s{sR0}\ns_cselect_b32 s{sR1}, {INV}, s{sR1}\ns_mov_b32 s{sRO}, s{sY0}")
e(f"s_mov_b32 m0, s{sM}")
e("s_waitcnt lgkmcnt(0)")
vXO=t[9]
for dx in range(5): e(f"buffer_load_dword {V(DW+dx)}, {V(t[6])}, {srd(sDS)}, 0 offen offset:{192*dx}")
for i in range(3): e(f"buffer_load_dword {V(DW+5+i)}, {V(t[7])}, {srd(sDL)}, 0 offen offset:{192*i}")
xd=[]
for r in range(18):
    with Cap() as g:
        so = sR0 if r==0 else (sR1 if r==1 else sRO)
        e(f"buffer_load_dwordx4 {V(vXO)}, {srd(sXS)}, s{so} offen lds")
        if r<17: e(f"s_add_u32 m0, m0, {RSB}")
        if 2<=r<17: e(f"s_add_u32 s{sRO}, s{sRO}, {ROW}")
    xd.append(g)
w1d=[]
for g_ in range(6):
    for i in range(3):
        with Cap() as g:
            if i==0 and g_==0: e(f"s_mov_b32 m0, s{sWM}\ns_nop 0")
            e(f"buffer_load_dwordx4 {V(vW1D[i])}, {srd(sW1)}, s{sWO} offen offset:{1024*i} lds")
            if i==2 and g_<5: e(f"s_add_u32 s{sWO}, s{sWO}, {16*768}\ns_add_u32 m0, m0, 3072")
        w1d.append(g)
def w2d(mt):
    base=[CB,W2B,CB][mt]; L=[]
    for i in range(6):
        with Cap() as g:
            if i==0: e(f"s_add_u32 m0, s{sW6}, {base}\ns_mov_b32 s{sWO}, {6144*mt+0x10000}".replace(str(6144*mt+0x10000),str(6144*mt)))
            e(f"buffer_load_dwordx4 {V(vWD)}, {srd(sW2)}, s{sWO} offen offset:{1024*(i%3)} lds")
            if i==2: e(f"s_add_u32 m0, m0, 3072\ns_add_u32 s{sWO}, s{sWO}, 3072")
        L.append(g)
    return L
with Cap() as AC:
    e(f"s_mul_i32 s{sT1}, s{sWV}, {TBW}\ns_add_u32 s{sT1}, s{sT1}, {CB}")
    e(f"v_mul_u32_u24 {V(t[10])}, {TBC}, {V(t[4])}\nv_lshl_add_u32 {V(t[10])}, {V(t[3])}, 6, {V(t[10])}\nv_add_u32 {V(vTW)}, s{sT1}, {V(t[10])}")
    e(f"v_min_u32 {V(t[10])}, 12, {V(vLANE)}\nv_mul_u32_u24 {V(t[10])}, {TBC}, {V(t[10])}\nv_add_u32 {V(t[10])}, s{sT1}, {V(t[10])}")
    for i in range(4): e(f"v_mov_b32 {V(vZ4+i)}, 0")
    for z in (WN+3,WN+7,WN+8,WN+12): e(f"v_mov_b32 {V(z)}, 0")
    e(f"ds_write_b128 {V(t[10])}, {V(vZ4,4)}")
    e(f"v_lshrrev_b32 {V(t[0])}, 4, {V(vLANE)}\nv_and_b32 {V(t[1])}, 3, {V(vLANE)}\nv_bfe_u32 {V(t[2])}, {V(vLANE)}, 2, 2")
    e(f"v_sub_u32 {V(t[5])}, {V(t[0])}, {V(t[1])}")
    for f in range(2):
        if f: e(f"v_add_u32 {V(t[5])}, 4, {V(t[5])}")
        e(f"v_lshlrev_b32 {V(t[6])}, 6, {V(t[5])}\nv_lshl_add_u32 {V(t[6])}, {V(t[2])}, 4, {V(t[6])}\nv_mov_b32 {V(t[7])}, {320 if f else -16}")
        e(f"v_cmp_gt_u32 vcc, 5, {V(t[5])}\nv_cndmask_b32 {V(t[6])}, {V(t[7])}, {V(t[6])}, vcc")
        e(f"v_add3_u32 {V(vAR[f])}, {V(t[6])}, s{sT1}, 16")
    for i in range(3):
        e(f"v_add_u32 {V(t[10])}, {64*i}, {V(vLANE)}\nv_mul_u32_u24 {V(t[10])}, 171, {V(t[10])}\nv_lshrrev_b32 {V(t[10])}, 11, {V(t[10])}")
        e(f"v_mul_u32_u24 {V(t[10])}, 576, {V(t[10])}\nv_lshl_add_u32 {V(vW1D[i])}, {V(vLANE)}, 4, {V(t[10])}")
    e(f"s_mul_i32 s{sWO}, s{sWV}, 192\ns_mul_i32 s{sWM}, s{sWV}, {WSL}\ns_mul_i32 s{sW6}, s{sWV}, 6144")
    e(f"v_lshl_add_u32 {V(vWD)}, {V(vLANE)}, 4, s{sWM}")
    e(f"s_mov_b32 s{sPLO}, 0x05040100\ns_mov_b32 s{sPHI}, 0x07060302\ns_mov_b32 s{sMSK}, 0xffff0000")
with Cap() as AC2:
    e(f"s_and_b32 s{sA}, s{sWV}, 1\ns_lshr_b32 s{sB}, s{sWV}, 1")
    for s,v in ((sAP,AP),(sSC,SC),(sI96,1/96)): e(f"s_mov_b32 s{s}, {f2u(v):#x}\ns_mov_b32 s{s+1}, {f2u(v):#x}")
    e(f"s_mov_b32 s{sEPS}, {f2u(1e-5):#x}\nv_mov_b32 {V(vEPS)}, s{sEPS}\nv_mov_b32 {V(vEPS+1)}, s{sEPS}")
    e(f"v_and_b32 {V(t[3])}, 1, {V(vLANE)}\nv_mul_u32_u24 {V(t[3])}, 6, {V(t[3])}\nv_and_b32 {V(t[5])}, 4, {V(vLANE)}\nv_add_u32 {V(t[3])}, {V(t[3])}, {V(t[5])}")
    e(f"v_and_b32 {V(t[4])}, 2, {V(vLANE)}\nv_mul_u32_u24 {V(t[4])}, 3, {V(t[4])}\nv_bfe_u32 {V(t[5])}, {V(vLANE)}, 3, 1\nv_lshl_add_u32 {V(t[4])}, {V(t[5])}, 2, {V(t[4])}")
    e(f"s_mul_i32 s{sT1}, s{sWV}, 48\ns_add_u32 s{sT1}, s{sT1}, {RAW}")
    e(f"v_add_u32 {V(t[5])}, {V(t[4])}, {V(t[0])}\nv_mul_u32_u24 {V(t[5])}, {RSB}, {V(t[5])}\nv_mul_u32_u24 {V(t[6])}, 192, {V(t[3])}\nv_add3_u32 {V(vBR)}, {V(t[5])}, {V(t[6])}, s{sT1}")
    e(f"s_mul_i32 s{sT1}, s{sWV}, {3*HC}\ns_add_u32 s{sT1}, s{sT1}, {HB}")
    e(f"v_add_u32 {V(t[5])}, {V(t[3])}, {V(t[0])}\nv_and_b32 {V(t[6])}, 1, {V(t[5])}\nv_mul_u32_u24 {V(t[6])}, 7, {V(t[6])}\nv_lshrrev_b32 {V(t[5])}, 1, {V(t[5])}\nv_mul_u32_u24 {V(t[7])}, 14, {V(t[4])}")
    e(f"v_add3_u32 {V(t[5])}, {V(t[5])}, {V(t[6])}, {V(t[7])}\nv_lshl_add_u32 {V(vHW)}, {V(t[5])}, 4, s{sT1}")
    e(f"v_min_u32 {V(t[5])}, 2, {V(vLANE)}\nv_mul_u32_u24 {V(t[5])}, {HC}, {V(t[5])}\nv_add_u32 {V(vZA)}, s{sT1}, {V(t[5])}")
    e(f"v_lshrrev_b32 {V(t[5])}, 2, {V(vLANE)}\nv_mul_u32_u24 {V(t[5])}, 192, {V(t[5])}\nv_mul_u32_u24 {V(t[6])}, {RSB}, {V(t[1])}\ns_mov_b32 s{sT1}, {RAW}\nv_add3_u32 {V(vST)}, {V(t[5])}, {V(t[6])}, s{sT1}")
    e(f"s_mul_i32 s{sT1}, s{sWV}, 48\nv_add_u32 {V(vSTW)}, s{sT1}, {V(vST)}")
    e(f"v_lshrrev_b32 {V(t[8])}, 5, {V(vLANE)}\nv_and_b32 {V(t[10])}, 1, {V(t[0])}")
    e(f"s_lshl_b32 s{sT0}, s{sA}, 1\ns_add_u32 s{sT0}, s{sT0}, s{sB}\ns_xor_b32 s{sT1}, s{sT0}, 1")
    e(f"v_lshl_add_u32 {V(t[5])}, {V(t[8])}, 3, {V(t[2])}\nv_mul_u32_u24 {V(t[5])}, 192, {V(t[5])}\nv_lshl_add_u32 {V(t[5])}, {V(t[10])}, 5, {V(t[5])}\nv_lshl_add_u32 {V(t[5])}, {V(t[1])}, 3, {V(t[5])}")
    e(f"s_mul_i32 s{sT2}, s{sT0}, {WSL}\ns_mul_i32 s{sT3}, s{sT1}, {WSL}")
    e(f"v_add_u32 {V(vW1[0])}, s{sT2}, {V(t[5])}\nv_add_u32 {V(vW1[1])}, s{sT3}, {V(t[5])}")
    e(f"v_lshl_add_u32 {V(t[5])}, {V(t[8])}, 2, {V(t[2])}\nv_mul_u32_u24 {V(t[5])}, 192, {V(t[5])}")
    e(f"v_and_b32 {V(t[6])}, 1, {V(vLANE)}\nv_lshl_add_u32 {V(t[5])}, {V(t[6])}, 4, {V(t[5])}\nv_and_b32 {V(t[6])}, 2, {V(vLANE)}\nv_lshl_add_u32 {V(t[5])}, {V(t[6])}, 2, {V(t[5])}")
    e(f"s_mul_i32 s{sT2}, s{sT0}, 6144\ns_mul_i32 s{sT3}, s{sT1}, 6144\ns_add_u32 s{sT2}, s{sT2}, {CB}\ns_add_u32 s{sT3}, s{sT3}, {CB}\ns_mul_i32 s{sT0}, s{sA}, 3")
    for ot in range(3):
        e(f"v_add3_u32 {V(t[6])}, {V(t[10])}, s{sT0}, {2*ot}\nv_subrev_u32 {V(t[7])}, 6, {V(t[6])}\nv_min_u32 {V(t[6])}, {V(t[6])}, {V(t[7])}")
        e(f"v_lshl_add_u32 {V(t[6])}, {V(t[6])}, 5, {V(t[5])}\nv_add_u32 {V(vW2A[ot])}, s{sT2}, {V(t[6])}\nv_add_u32 {V(vW2B[ot])}, s{sT3}, {V(t[6])}")
    e(f"s_mul_i32 s{sT1}, s{sB}, 1536\ns_add_u32 s{sT1}, s{sT1}, {HB}")
    e(f"v_and_b32 {V(t[11])}, 31, {V(vLANE)}\nv_mul_u32_u24 {V(t[12])}, {HC}, {V(t[8])}\nv_lshl_add_u32 {V(t[5])}, {V(t[11])}, 4, {V(t[12])}\nv_add_u32 {V(vH1R)}, s{sT1}, {V(t[5])}")
    e(f"s_mul_i32 s{sT1}, s{sWV}, {XWV}\ns_xor_b32 s{sT2}, s{sWV}, 1\ns_mul_i32 s{sT2}, s{sT2}, {XWV}")
    e(f"v_lshl_add_u32 {V(vXW)}, {V(vLANE)}, 4, s{sT1}\nv_lshl_add_u32 {V(vXR)}, {V(vLANE)}, 4, s{sT2}")
    e(f"v_bfe_u32 {V(t[13])}, {V(vLANE)}, 3, 1\nv_and_b32 {V(t[14])}, 7, {V(vLANE)}")
    e(f"v_cmp_eq_u32 vcc, {V(t[13])}, {V(t[10])}\nv_cndmask_b32 {V(t[15])}, 4, {V(t[14])}, vcc\nv_min_u32 {V(t[15])}, 4, {V(t[15])}")
    e(f"v_lshl_add_u32 {V(t[5])}, {V(t[15])}, 4, {V(t[12])}\nv_add_u32 {V(vBP)}, {HB+192*16}, {V(t[5])}")
    e(f"s_add_u32 s{sT1}, s{sT1}, {OFFG}")
    e(f"v_lshlrev_b32 {V(t[5])}, 5, {V(t[15])}\nv_lshl_add_u32 {V(t[5])}, {V(t[8])}, 4, {V(t[5])}\nv_add_u32 {V(vGR)}, s{sT1}, {V(t[5])}")
    e(f"v_and_b32 {V(t[5])}, 15, {V(vLANE)}\nv_lshlrev_b32 {V(t[5])}, 5, {V(t[5])}\nv_lshl_add_u32 {V(t[5])}, {V(t[10])}, 4, {V(t[5])}\nv_lshl_add_u32 {V(t[5])}, {V(t[8])}, 3, {V(t[5])}\nv_add_u32 {V(vGW)}, s{sT1}, {V(t[5])}")
    e(f"v_min_u32 {V(t[5])}, 23, {V(vLANE)}\nv_lshrrev_b32 {V(t[6])}, 2, {V(t[5])}")
    e(f"v_and_b32 {V(t[7])}, 1, {V(t[5])}\nv_lshlrev_b32 {V(t[7])}, 9, {V(t[7])}\nv_and_b32 {V(t[13])}, 2, {V(t[5])}\nv_lshl_add_u32 {V(t[7])}, {V(t[13])}, 7, {V(t[7])}")
    e(f"s_lshl_b32 s{sT1}, s{sWV}, 4\ns_add_u32 s{sT1}, s{sT1}, {OFFO}\nv_add_u32 {V(t[7])}, s{sT1}, {V(t[7])}")
    for a_,dst in ((0,vME),(1,vMO)):
        if a_: e(f"v_add_u32 {V(t[13])}, 3, {V(t[6])}\nv_subrev_u32 {V(t[6])}, 3, {V(t[6])}\nv_min_u32 {V(t[6])}, {V(t[6])}, {V(t[13])}")
        e(f"v_lshrrev_b32 {V(t[13])}, 1, {V(t[6])}\nv_lshl_add_u32 {V(t[13])}, {V(t[13])}, 10, {V(t[7])}\nv_and_b32 {V(t[14])}, 1, {V(t[6])}\nv_lshl_add_u32 {V(dst)}, {V(t[14])}, 7, {V(t[13])}")
    e(f"s_add_u32 s{sT2}, s{sY0}, s{sX0}\ns_mul_i32 s{sT1}, s{sWV}, 384\ns_add_u32 s{sT1}, s{sT1}, s{sT2}\ns_add_u32 s{sT1}, s{sT1}, {13*ROW+7*192}")
    e(f"v_lshl_add_u32 {V(t[5])}, {V(vLANE)}, 3, s{sT1}\nv_mov_b32 {V(t[6])}, {INV}\nv_cmp_gt_u32 vcc, 24, {V(vLANE)}\nv_cndmask_b32 {V(vMG)}, {V(t[6])}, {V(t[5])}, vcc")
    e(f"s_mul_i32 s{sT1}, s{sA}, 96\ns_add_u32 s{sT2}, s{sT2}, s{sT1}\ns_mul_i32 s{sT1}, s{sB}, 96\ns_mov_b32 s{sT3}, {ROW}")
    e(f"v_lshl_add_u32 {V(t[8])}, {V(t[8])}, 4, s{sT2}\nv_add_u32 {V(t[11])}, s{sT1}, {V(t[11])}")
    for tl,dst in ((2,vPOs[2]),(1,vPOs[1]),(0,vPOs[0])):
        src=t[11]
        if tl: e(f"v_add_u32 {V(t[5])}, {32*tl}, {V(t[11])}"); src=t[5]
        e(f"v_mul_u32_u24 {V(t[6])}, 4682, {V(src)}\nv_lshrrev_b32 {V(t[6])}, 16, {V(t[6])}\nv_mul_u32_u24 {V(t[7])}, 14, {V(t[6])}\nv_sub_u32 {V(t[7])}, {V(src)}, {V(t[7])}")
        e(f"v_lshlrev_b32 {V(t[7])}, 1, {V(t[7])}\nv_subrev_u32 {V(t[13])}, 13, {V(t[7])}\nv_min_u32 {V(t[7])}, {V(t[7])}, {V(t[13])}")
        e(f"v_mul_u32_u24 {V(t[7])}, 192, {V(t[7])}\nv_mad_u32_u24 {V(t[6])}, {V(t[6])}, s{sT3}, {V(t[8])}\nv_add_u32 {V(dst)}, {V(t[6])}, {V(t[7])}")
def afrag(cl,f): return ('a',8*cl+4*f)
TV=[[],[]]; TR=[[],[]]
for rho in range(2):
    with Cap() as TV[rho]:
        if rho==0: e("s_waitcnt vmcnt(XXX)")
        for i in range(8):
            e(f"v_lshlrev_b32 {V(DU+i)}, 16, {V(DW+i)}" if rho==0 else f"v_and_b32 {V(DU+i)}, s{sMSK}, {V(DW+i)}")
        for i in range(3): e(f"v_add_f32 {V(DU+1+i)}, {V(DU+1+i)}, {V(DU+5+i)}")
        w=[V(DU+i) for i in range(5)]
        E=[(w[0],w[1]),(w[2],w[3]),(w[4],'0')]; Od=[('0',w[0]),(w[1],w[2]),(w[3],w[4])]
        for k in range(3):
            e(f"v_cvt_pk_bf16_f32 {V(WN+k)}, {E[k][0]}, {E[k][1]}")
            e(f"v_cvt_pk_bf16_f32 {V(WN+4+k)}, {Od[k][0]}, {Od[k][1]}")
            e(f"v_cvt_pk_bf16_f32 {V(WN+9+k)}, {E[k][0]}, {E[k][1]}")
            e(f"v_cvt_pk_bf16_f32 {V(WN+13+k)}, {Od[k][0]}, {Od[k][1]}")
    for c4 in range(6):
        with Cap() as g:
            if c4==0:
                for ox in range(4): e(f"ds_write_b128 {V(vTW)}, {V(WN+4*ox,4)} offset:{16+16*ox}")
            for cp in (2*c4,2*c4+1):
                for f in range(2):
                    e(f"ds_read_b128 {R(afrag(2*cp+rho,f),4)}, {V(vAR[f])} offset:{cp*TBC}")
        TR[rho].append(g)
XPER=int(os.environ.get('XPER','48')); NA=int(os.environ.get('NA','40')); RPER=int(os.environ.get('RPER','40'))
for g in xd[:3]: cur[0].extend(g)
left=merge(AC+AC2[:NA],xd[3:],XPER)
nx=18-len(left)
TV[0][0]=I(f"s_waitcnt vmcnt({nx})")
stamp("ac")
left=merge(TV[0],left,XPER)
dmaq=left+w1d
rest=AC2[NA:]; h1=max(0,len(rest)//2-len(TV[1])//2)
def comb(tr):
    L=[]
    for g in tr:
        L.append(g+(dmaq.pop(0) if dmaq else []))
    return L
l2=merge(rest[:h1]+TV[1],comb(TR[0]),RPER,start=RPER)
for g in l2: cur[0].extend(g)
l2=merge(rest[h1:],comb(TR[1]),RPER,start=RPER)
for g in l2: cur[0].extend(g)
while len(dmaq)>len(w1d): cur[0].extend(dmaq.pop(0))
left=dmaq
nw1=len(w1d)-len(left)
stamp("table")
e(f"s_waitcnt vmcnt({nw1}) lgkmcnt(0)")
stamp("xarr")
e("s_barrier")
dq=left+w2d(0)
def bread(st,i):
    u,f=st>>1,st&1
    return f"ds_read_b128 {V(RAWR+32*(st&1)+4*i,4)}, {V(vBR)} offset:{4*f*RSB+192*i+16*u}"
def perms(k):
    st,j=k>>3,k&7; d,hi=j>>1,j&1
    X=lambda i: V(RAWR+32*(st&1)+4*i+d)
    return [f"v_perm_b32 {V(BT+4*(k%3)+pp)}, {X(2*pp+1)}, {X(2*pp)}, s{sPHI if hi else sPLO}" for pp in range(4)]
for i in range(8): e(bread(0,i))
for i in range(8): e(bread(1,i))
e("s_waitcnt lgkmcnt(8)")
e(";@align8")
for x in perms(0): e(x)
for k in range(48):
    st,j=k>>3,k&7; u,f=st>>1,st&1; cl=8*u+j
    if k+1<48:
        for x in perms(k+1): e(x)
    d=V(ACC+4*cl,4)
    e(f"v_mfma_f32_16x16x32_bf16 {d}, {R(afrag(cl,f),4)}, {V(BT+4*(k%3),4)}, {d if f else '0'}")
    kk=k+1-8
    if k>=7:
        s2=(k-7)//8+2; off=(k-7)%8
        if s2<6 and off<4:
            e(bread(s2,2*off)); e(bread(s2,2*off+1))
    if k%8==5 and k<40: e("s_waitcnt lgkmcnt(0)")
    if dq and ((k<7 and k%2==1) or (k>=7 and ((k-7)%8>=4 or k>=39))):
        cur[0].extend(dq.pop(0))
stamp("cloop")
with Cap() as STC:
    for cl in range(24):
        for h in range(2):
            a=V(ACC+4*cl+2*h,2)
            if cl==0: e(f"v_pk_mul_f32 {V(S2+2*h,2)}, {a}, {a}")
            else: e(f"v_pk_fma_f32 {V(S2+2*h,2)}, {a}, {a}, {V(S2+2*h,2)}")
            if cl==1: e(f"v_pk_add_f32 {V(S1+2*h,2)}, {V(ACC+2*h,2)}, {a}")
            elif cl>1: e(f"v_pk_add_f32 {V(S1+2*h,2)}, {V(S1+2*h,2)}, {a}")
e(";@align8")
left=merge(STC,dq,64)
for g in left: cur[0].extend(g)
stamp("stats")
e(f"ds_write_b128 {V(vSTW)}, {V(S1,4)}\nds_write_b128 {V(vSTW)}, {V(S2,4)} offset:16")
e("s_waitcnt vmcnt(0) lgkmcnt(0)")
stamp("conv")
e("s_barrier")
def tr1(r): return [f"ds_read_b64_tr_b16 {R((w1f(r,ks)[0],w1f(r,ks)[1]+2*h),2)}, {V(vW1[r//3])} offset:{(16*ks+4*h)*192+64*(r%3)}" for ks in range(6) for h in range(2)]
def tr2(r):
    L=[]; mt=r%3
    for u in range(2):
        for ot in range(3):
            tt=w2f(r,u,ot)
            for h in range(2):
                L.append(f"ds_read_b64_tr_b16 {R((tt[0],tt[1]+2*h),2)}, {V((vW2A if r<3 else vW2B)[ot])} offset:{(16*u+8*h)*192+(W2B-CB if mt==1 else 0)}")
    return L
for w_ in range(4):
    for h in range(2): e(f"ds_read_b128 {V(SR+8*w_+4*h,4)}, {V(vST)} offset:{48*w_+16*h}")
for x in tr1(0): e(x)
dq=[]
sp=lambda s: f"s[{s}:{s+1}]"
e("s_waitcnt lgkmcnt(12)")
e(";@align8")
for k in range(4):
    e(f"v_pk_add_f32 {V(SR+2*k,2)}, {V(SR+2*k,2)}, {V(SR+8+2*k,2)}")
    e(f"v_pk_add_f32 {V(SR+16+2*k,2)}, {V(SR+16+2*k,2)}, {V(SR+24+2*k,2)}")
for k in range(4): e(f"v_pk_add_f32 {V(SR+2*k,2)}, {V(SR+2*k,2)}, {V(SR+16+2*k,2)}")
for h in range(2): e(f"v_pk_mul_f32 {V(SR+2*h,2)}, {V(SR+2*h,2)}, {sp(sI96)}")
for h in range(2): e(f"v_pk_fma_f32 {V(SR+4+2*h,2)}, {V(SR+4+2*h,2)}, {sp(sI96)}, {V(vEPS,2)}")
for h in range(2): e(f"v_pk_fma_f32 {V(SR+4+2*h,2)}, {V(SR+2*h,2)}, {V(SR+2*h,2)}, {V(SR+4+2*h,2)} neg_lo:[1,0,0] neg_hi:[1,0,0]")
for j in range(4): e(f"v_max_f32 {V(SR+4+j)}, s{sEPS}, {V(SR+4+j)}")
for j in range(4): e(f"v_rsq_f32 {V(SR+4+j)}, {V(SR+4+j)}")
for h in range(2): e(f"v_pk_mul_f32 {V(SR+4+2*h,2)}, {V(SR+4+2*h,2)}, {sp(sSC)}")
for h in range(2): e(f"v_pk_mul_f32 {V(SR+2*h,2)}, {V(SR+2*h,2)}, {V(SR+4+2*h,2)} neg_lo:[1,0] neg_hi:[1,0]")
e(";@align8")
trq=tr2(0)+tr2(3)
for u in range(3):
    for hh in range(2):
        for cl in range(8*u,8*u+8):
            a=V(ACC+4*cl+2*hh,2)
            e(f"v_pk_fma_f32 {a}, {a}, {V(SR+4+2*hh,2)}, {V(SR+2*hh,2)}")
        for j in (2*hh,2*hh+1):
            for d in range(4):
                e(f"v_cvt_pk_bf16_f32 {V(HP+16*u+4*j+d)}, {V(ACC+4*(8*u+2*d)+j)}, {V(ACC+4*(8*u+2*d+1)+j)}")
        for j in (2*hh,2*hh+1):
            e(f"ds_write_b128 {V(vHW)}, {V(HP+16*u+4*j,4)} offset:{u*HC+224*j}")
        if u==0 and hh==0: e(f"ds_write_b128 {V(vZA)}, {V(vZ4,4)} offset:{196*16}")
        if u<2:
            for x in trq[:6]: e(x)
            trq=trq[6:]
        if dq:
            g=dq.pop(0); cur[0].extend(g)
stamp("lnw")
e("s_waitcnt vmcnt(0) lgkmcnt(0)")
stamp("ln")
e("s_barrier")
if DBG=='h':
    e(f"s_mul_i32 s{sT1}, s2, 40960\ns_lshl_b32 s{sT2}, s{sWV}, 10\nv_lshl_add_u32 {V(t[0])}, {V(vLANE)}, 4, s{sT2}\nv_add_u32 {V(t[1])}, {HB}, {V(t[0])}\nv_add_u32 {V(t[0])}, s{sT1}, {V(t[0])}")
    for k in range(9):
        e(f"ds_read_b128 {V(16,4)}, {V(t[1])} offset:{4096*k}\ns_waitcnt lgkmcnt(0)")
        e(f"global_store_dwordx4 {V(t[0])}, {V(16,4)}, s[{sWS}:{sWS+1}]\nv_add_u32 {V(t[0])}, 4096, {V(t[0])}\ns_waitcnt vmcnt(0)")
    e(f"s_cmp_lg_u32 s{sWV}, 0\ns_cbranch_scc1 L_end")
    e(f"ds_read_b128 {V(16,4)}, {V(t[1])} offset:{4096*9}\ns_waitcnt lgkmcnt(0)")
    e(f"global_store_dwordx4 {V(t[0])}, {V(16,4)}, s[{sWS}:{sWS+1}]\ns_waitcnt vmcnt(0)")
    e("s_endpgm")
NC=18
def G1(c):
    r=c%6; d=V(H(c),16)
    return [(f"v_mfma_f32_32x32x16_bf16 {d}, {R(w1f(r,ks),4)}, {V(B1+4*ks,4)}, {d if ks else '0'}",32) for ks in range(6)]
def G2(c,order=None):
    r=c%6; L=[]
    for u,ot in (order or [(u,ot) for u in range(2) for ot in range(3)]):
        d=V(O+16*ot,16)
        L.append((f"v_mfma_f32_32x32x16_bf16 {d}, {R(w2f(r,u,ot),4)}, {V(G[u],4)}, {d if (r or u) else '0'}",32))
    return L
def tz_(h,tt,n):
    L=[f"v_pk_fma_f32 {V(tt+i,2)}, {V(h+i,2)}, {V(h+i,2)}, {sp(sAP)}" for i in range(0,n,2)]
    L+=[f"v_pk_mul_f32 {V(tt+i,2)}, {V(h+i,2)}, {V(tt+i,2)} neg_lo:[1,0] neg_hi:[1,0]" for i in range(0,n,2)]
    return L
def ex_(tt,n): return [f"v_exp_f32 {V(tt+i)}, {V(tt+i)}" for i in range(n)]
def dd_(tt,n): return [f"v_pk_fma_f32 {V(tt+i,2)}, {V(tt+i,2)}, {sp(sSC)}, {sp(sSC)}" for i in range(0,n,2)]
def rc_(tt,n): return [f"v_rcp_f32 {V(tt+i)}, {V(tt+i)}" for i in range(n)]
def gg_(h,tt,n): return [f"v_pk_mul_f32 {V(tt+i,2)}, {V(h+i,2)}, {V(tt+i,2)}" for i in range(0,n,2)]
def cv(c): return [f"v_cvt_pk_bf16_f32 {V(G[i>>2]+(i&3))}, {V(T(c)+2*i)}, {V(T(c)+2*i+1)}" for i in range(8)]
def b1r(tl): return [f"ds_read_b128 {V(B1+4*ks,4)}, {V(vH1R)} offset:{ks*2*HC+512*tl}" for ks in range(6)]
def xw(tl): return [f"ds_write_b128 {V(vXW)}, {V(O+24+4*k,4)} offset:{XBUF*(tl&1)+1024*k}" for k in range(6)]
def xr(tl,k,dst): return f"ds_read_b128 {V(dst,4)}, {V(vXR)} offset:{XBUF*(tl&1)+1024*k}"
def xdma(tl): return [[f"s_add_u32 m0, s{sW6}, {RESO[tl]+992*k+0x100000}".replace(str(RESO[tl]+992*k+0x100000),hex(RESO[tl]+992*k) if RESO[tl]+992*k>64 else '0'), f"buffer_load_dwordx4 {V(vPOs[tl])}, {srd(sXS)}, 0 offen offset:{32*k} lds"] for k in range(3)]
def xld(tl): return [f"ds_read_b128 {V(RR+4*k,4)}, {V(vXW)} offset:{RESO[tl]+1024*k}" for k in range(3)]
def unp():
    L=[]
    for d in range(12):
        L.append(f"v_lshlrev_b32 {V(KR+2*d)}, 16, {V(RR+d)}")
        L.append(f"v_and_b32 {V(KR+2*d+1)}, s{sMSK}, {V(RR+d)}")
    return L
def kadd(src,lo,n): return [f"v_pk_add_f32 {V(KR+lo+i,2)}, {V(KR+lo+i,2)}, {V(src+i,2)}" for i in range(0,n,2)]
def cvo(): return [f"v_cvt_pk_bf16_f32 {V(RR+d)}, {V(KR+2*d)}, {V(KR+2*d+1)}" for d in range(12)]
def sto(tl): return [f"buffer_store_dwordx4 {V(RR+4*k,4)}, {V(vPOs[tl])}, {srd(sOS)}, 0 offen offset:{32*k} {STORE_MOD}" for k in range(3)]
HM=16; TM=28; GM=40; BM=KR; OM=RR
def G1m(): return [(f"v_mfma_f32_16x16x32_bf16 {V(HM+4*r,4)}, {R(w1f(r,ks),4)}, {V(BM+4*ks,4)}, {V(HM+4*r,4) if ks else '0'}",16) for r in range(3) for ks in range(6)]
def G2m(): return [(f"v_mfma_f32_16x16x32_bf16 {V(OM+4*ot,4)}, {R(w2f(r,u,ot),4)}, {V(BM+8*r+4*u,4)}, {V(OM+4*ot,4) if (r or u) else '0'}",16) for r in range(3) for u in range(2) for ot in range(3)]
def cost(x): return icost(I(x)) if isinstance(x,str) else icost(x)
def put(x):
    if isinstance(x,str): e(x)
    else: cur[0].append(x)
def Mphase(MF,F,S,tail=36):
    F=[I(x) if isinstance(x,str) else x for x in F]; rem=sum(cost(x) for x in F)
    for k,(m,dur) in enumerate(MF):
        grp=[I(x) if isinstance(x,str) else x for x in S.get(k,[])]
        need=I(m).reads.union(*[x.reads for x in grp]) if grp else I(m).reads
        last=max([n for n,x in enumerate(F) if x.writes&need],default=-1)
        for _ in range(last+1):
            rem-=cost(F[0]); put(F.pop(0))
        e(m)
        b=dur-8
        for n,x in enumerate(grp):
            put(x); c_=cost(x)
            if n==0 and x.kind in('sopp','salu') and x.base!='s_barrier': c_=0
            b-=c_
        if k<len(MF)-1:
            while F and b>0 and rem-cost(F[0])>=tail-4:
                c_=cost(F[0]); put(F.pop(0)); b-=c_; rem-=c_
    for x in F: put(x)
def spread(S,L,idxs):
    n=len(idxs); per=-(-len(L)//n)
    for k,ix in enumerate(idxs):
        S.setdefault(ix,[]).extend(L[k*per:(k+1)*per])
for ks in range(6): e(f"ds_read_b128 {V(BM+4*ks,4)}, {V(vBP)} offset:{2*ks*HC}")
for x in tr1(1): e(x)
dq=w2d(1)+w2d(2)
for g in dq[:3]: cur[0].extend(g)
S={}
spread(S,tr1(2),range(0,6)); spread(S,b1r(0),range(6,9)); spread(S,tr1(3),range(9,15))
for k,g in enumerate(dq[3:8]): S.setdefault(4*k+1,[]).extend(g)
dq=dq[8:]
Mphase(G1m(),[],S)
ok=lambda c: 0<=c<NC
for c in range(-1,20):
    P=[]
    if ok(c-1): P+=dd_(T(c-1),16)
    if c==0: P+=dd_(TM,12)
    if ok(c-2): P+=gg_(H(c-2),T(c-2),16)
    if c==1: P+=gg_(HM,TM,12)
    if c==-1: P+=tz_(HM,TM,12)
    if ok(c): P+=tz_(H(c),T(c),16)
    if c==5:
        P+=[f"v_pk_add_f32 {V(KR+h,2)}, {V(KR+h,2)}, {V(KR+4+h,2)}" for h in (0,2)]+[f"v_pk_add_f32 {V(KR+8+h,2)}, {V(KR+8+h,2)}, {V(KR+12+h,2)}" for h in (0,2)]
        P+=[f"v_pk_add_f32 {V(KR+h,2)}, {V(KR+h,2)}, {V(KR+18+h,2)}" for h in (0,2)]+[f"v_pk_add_f32 {V(KR+h,2)}, {V(KR+h,2)}, {V(KR+8+h,2)}" for h in (0,2)]
    ph=(c-7)%6; tl=(c-7)//6
    if c>=8 and ph==1: P+=kadd(O,0,24)
    if c>=10 and ph==3: P+=kadd(RR,0,12)
    if c>=11 and ph==4: P+=kadd(RR,12,12)
    e(";@align8")
    for x in P: e(x)
    MF=[]; F=[]; S={}
    if ok(c+1): MF+=G1(c+1)
    if ok(c-2): F+=cv(c-2)
    if c==1: F+=[f"v_cvt_pk_bf16_f32 {V(GM+i)}, {V(TM+2*i)}, {V(TM+2*i+1)}" for i in range(6)]
    if c==5: F+=[f"v_cvt_pk_bf16_f32 {V(KR+22+h)}, {V(KR+2*h)}, {V(KR+2*h+1)}" for h in range(2)]
    if c>=11 and ph==4: F+=cvo()
    if c==-1: F+=ex_(TM,12)
    if ok(c): F+=ex_(T(c),16)
    if c==0: F+=rc_(TM,12)
    if ok(c-1): F+=rc_(T(c-1),16)
    if c==4: F+=[f"v_lshlrev_b32 {V(KR+18)}, 16, {V(KR+16)}",f"v_and_b32 {V(KR+19)}, s{sMSK}, {V(KR+16)}",f"v_lshlrev_b32 {V(KR+20)}, 16, {V(KR+17)}",f"v_and_b32 {V(KR+21)}, s{sMSK}, {V(KR+17)}"]
    if c>=7 and ph==0: F+=unp()
    if not MF and ok(c-2):
        n=8+(12 if (c>=11 and ph==4) else 0)
        for x in F[:8]: e(x)
        F=F[8:]
    if ok(c-2): MF+=G2(c-2, [(0,2),(1,2),(0,1),(1,1),(0,0),(1,0)] if c==19 else None)
    if c==2: MF+=G2m()
    nm=len(MF)
    if c==-1:
        spread(S,tr1(4),range(0,6))
        for k,g in enumerate(dq): S[k+1].extend(g)
    if c==0: spread(S,tr1(5),range(0,6))
    if c==1:
        S[0]=["s_waitcnt vmcnt(0) lgkmcnt(0)","s_barrier"]
        S[2]=[f"ds_write_b64 {V(vGW)}, {V(GM+2*r,2)} offset:{512*r}" for r in range(3)]
        S[3]=[f"ds_read_b128 {V(BM+8*r+4*u,4)}, {V(vGR)} offset:{512*r+256*u}" for r in range(3) for u in range(2)]
        spread(S,tr2(1)+tr2(2),[1,4,5])
    if c==2:
        spread(S,tr2(4)+tr2(5),range(12,30)[:12])
        for k,g in enumerate(xdma(0)+xdma(1)+xdma(2)):
            S.setdefault(k,[]).append(g[0]); S.setdefault(k+1,[]).insert(0,g[1])
    if c==3:
        for ot in range(3): S[2*ot]=[f"ds_write_b128 {V(vXW)}, {V(OM+4*ot,4)} offset:{OFFO+1024*ot}"]
        S[7]=[f"buffer_load_dwordx2 {V(KR+16,2)}, {V(vMG)}, {srd(sXS)}, 0 offen"]
    if c==4:
        S[0]=["s_waitcnt lgkmcnt(0)","s_barrier"]
        S[1]=[f"ds_read_b128 {V(KR+4*k,4)}, {V(vMO if k&1 else vME)} offset:{XWV*k}" for k in range(4)]
        S[5]=["s_waitcnt vmcnt(0)"]
    if c==5: S[3]=[f"buffer_store_dwordx2 {V(KR+22,2)}, {V(vMG)}, {srd(sOS)}, 0 offen {STORE_MOD}"]
    if c%6==4 and c<12:
        spread(S,b1r(c//6+1),[6,7,8]); S.setdefault(11,[]).append("s_waitcnt lgkmcnt(0)")
    if c>=6 and ph==5: S[nm-2]=xld(tl+1)
    if c>=7 and ph==0: S.setdefault(0,[]).append("s_waitcnt lgkmcnt(0)")
    if c>=8 and ph==1:
        for k,x in enumerate(xw(tl)): S[k]=[x]
    if c>=9 and ph==2:
        S[0]=["s_waitcnt lgkmcnt(0)","s_barrier"]; S[1]=[xr(tl,k,RR+4*k) for k in range(3)]; S[11]=["s_waitcnt lgkmcnt(0)"]
    if c>=10 and ph==3:
        S.setdefault(0,[]).extend([xr(tl,3+k,RR+4*k) for k in range(3)])
        if 11 not in S: S[11]=["s_waitcnt lgkmcnt(0)"]
    if c>=11 and ph==4:
        i0=4 if nm==12 else 2
        for k,x in enumerate(sto(tl)): S[i0+k]=[x]
    if c==19:
        w_=xw(2)
        S.setdefault(4,[]).extend(w_[2:4]); S.setdefault(5,[]).extend(w_[4:6])
    Mphase(MF,F,S)
    if c in (-1,2,7,13,19): stamp(f"M{c}")
for x in xw(2)[:2]: e(x)
for x in kadd(O,0,24): e(x)
e("s_waitcnt lgkmcnt(0)\ns_barrier")
for k in range(6): e(xr(2,k,64+4*k))
for k in range(3):
    for x in kadd(64+8*k,8*k,8): e(x)
    for x in cvo()[4*k:4*k+4]: e(x)
    e(sto(2)[k])
if STAMPS or PROBE: e("s_waitcnt vmcnt(0)")
stamp("end")
if STAMPS:
    e(f"v_mov_b32 {V(16)}, 0")
    for k in range(len(stampnames)):
        e(f"s_sub_u32 s{sT1}, s{70+2*k}, s70\nv_writelane_b32 {V(16)}, s{sT1}, {k}")
    e(f"v_writelane_b32 {V(16)}, s70, 63")
    e(f"s_lshl_b32 s{sT1}, s2, 10\ns_lshl_b32 s{sT2}, s{sWV}, 8\ns_add_u32 s{sT1}, s{sT1}, s{sT2}\nv_mbcnt_lo_u32_b32 {V(17)}, -1, 0\nv_mbcnt_hi_u32_b32 {V(17)}, -1, {V(17)}\nv_lshl_add_u32 {V(17)}, {V(17)}, 2, s{sT1}\nglobal_store_dword {V(17)}, {V(16)}, s[{sWS}:{sWS+1}]\ns_waitcnt vmcnt(0)")
if PROBE:
    e("s_sub_u32 s98, s98, s96\ns_memrealtime s[90:91]\ns_waitcnt lgkmcnt(0)\nL_dl:\ns_memrealtime s[92:93]\ns_waitcnt lgkmcnt(0)\ns_sub_u32 s3, s92, s90\ns_cmp_lt_u32 s3, s98\ns_cbranch_scc1 L_dl")
e("L_end:\ns_endpgm")
DROP=[d.split(':') for d in os.environ.get('DROP','').split(',') if d]
if DROP:
    ph=None; out=[]
    for i in reversed(p.L):
        if i.kind=='none' and '@phase' in i.text: ph=i.text.split()[1]
        if i.kind!='none' and any(ph==a and i.text.startswith(b) for a,b in DROP): continue
        out.append(i)
    p.L=out[::-1]
p.finalize()
p.align_fix()
hdr=open('cdna_kernels/'+NAME+'.s.ref').read().split('\n')
head=[l for l in hdr if l.startswith(';') and '@launch' not in l]
txt='\n'.join(head)+f"\n; @launch grid=(256,1,1) block=(256,1,1) lds={LDS_TOTAL}\n"
txt+=f""".amdgcn_target "amdgcn-amd-amdhsa--gfx950"
.text
.globl {NAME}_kernel
.p2align 8
.type {NAME}_kernel,@function
{NAME}_kernel:
"""+p.text()+f"""; pad so that the code prefetch stays inside the text section
.fill 4096, 4, 0xbf810000
.section .rodata,"a"
.p2align 6
.amdhsa_kernel {NAME}_kernel
  .amdhsa_next_free_vgpr 512
  .amdhsa_next_free_sgpr 102
  .amdhsa_accum_offset 256
  .amdhsa_group_segment_fixed_size 0
  .amdhsa_kernarg_size 64
  .amdhsa_user_sgpr_count 2
  .amdhsa_user_sgpr_kernarg_segment_ptr 1
  .amdhsa_system_sgpr_workgroup_id_x 1
  .amdhsa_float_denorm_mode_32 3
.end_amdhsa_kernel
"""
out=sys.argv[1] if len(sys.argv)>1 else 'cdna_kernels/'+NAME+'.s'
open(out,'w').write(txt)
if STAMPS: open(out+'.stamps','w').write(' '.join(stampnames))
assert all((s_*4682)>>16==s_//14 for s_ in range(224))
assert all((l*43)>>9==l//12 for l in range(64))
assert all((u*171)>>11==u//12 for u in range(192))
```
